```python
import torch

def _softmax(x, axis=-1):
    return torch.softmax(x, dim=axis)
def _gelu(x):
    return torch.nn.functional.gelu(x, approximate="tanh")
def _silu(x):
    return torch.nn.functional.silu(x)
def _sigmoid(x):
    return torch.sigmoid(x)
def _layernorm(x, axis=-1, eps=1e-5):
    m = x.mean(dim=axis, keepdim=True)
    v = x.var(dim=axis, keepdim=True, unbiased=False)
    return (x - m) / torch.sqrt(v + eps)
def _scatter_add(tgt, idx, src, axis=0):
    return tgt.clone().index_add_(axis, idx, src)
def _segment_sum(src, seg, n):
    out = torch.zeros((n,) + src.shape[1:], dtype=src.dtype)
    return out.index_add_(0, seg, src)
def _pad(x, pw):
    flat = tuple(v for pair in reversed(pw) for v in pair)
    return torch.nn.functional.pad(x, flat)

kernel_name = 'parallel_sum__spectral_gfnet__dense_activation_mish__prompt'

def setup_inputs():

    _w = (lambda a: (lambda t: t.to(torch.bfloat16) if t.is_floating_point() else t)(torch.as_tensor(a)))
    def _A_setup():
        B, S, D = 1, 2048, 576
        Df = D // 2 + 1
        return {
            "x": _w((lambda *s: torch.randn(*s, dtype=torch.bfloat16) * 0.05)(B, S, D)),
            "w_r": _w((lambda *s: torch.randn(*s, dtype=torch.bfloat16) * 0.8)(S, Df) * 0.02),
            "w_i": _w((lambda *s: torch.randn(*s, dtype=torch.bfloat16) * 0.8)(S, Df) * 0.02),
        }
    _A_in = _A_setup()

    def _B_setup():
        B, S, D, F = 1, 2048, 576, 4608
        return {
            "x": _w((lambda *s: torch.randn(*s, dtype=torch.bfloat16) * 0.05)(B, S, D)),
            "w1": _w((lambda *s: torch.randn(*s, dtype=torch.bfloat16) * 0.8)(D, F) * (D ** -0.5)),
            "b1": _w((lambda *s: torch.randn(*s, dtype=torch.bfloat16) * 0.2)(F)),
            "w2": _w((lambda *s: torch.randn(*s, dtype=torch.bfloat16) * 0.1)(F, D) * (F ** -0.5)),
        }
    _B_in = _B_setup()

    return {
        "A_x": _A_in["x"],
        "A_w_r": _A_in["w_r"],
        "A_w_i": _A_in["w_i"],
        "B_x": _B_in["x"],
        "B_w1": _B_in["w1"],
        "B_b1": _B_in["b1"],
        "B_w2": _B_in["w2"],
    }

def reference(A_x, A_w_r, A_w_i, B_x, B_w1, B_b1, B_w2):
    def _A_ref(x, w_r, w_i):
        B, S, D = x.shape
        X = (lambda x, axes=(-2,-1): torch.fft.rfft2(x.float(), dim=axes))(x, axes=(-2, -1))
        W = w_r + 1j * w_i
        X = X * W
        y = (lambda x, s, axes=(-2,-1): torch.fft.irfft2(x, s=s, dim=axes).to(torch.bfloat16))(X, (S, D), axes=(-2, -1))
        return y

    def _B_ref(x, w1, b1, w2):
        h = torch.einsum("bsd,df->bsf", x, w1) + b1
        sp = torch.log1p(torch.exp(-torch.abs(h))) + torch.where(h > 0, h, torch.zeros_like(h))
        act = h * torch.tanh(sp)
        return torch.einsum("bsf,fd->bsd", act, w2)

    x = A_x
    xn = _layernorm(x, axis=-1)
    return x + _A_ref(xn, A_w_r, A_w_i) + _B_ref(xn, B_w1, B_b1, B_w2)
```

```python
import re
TRANS = ("v_exp_f32", "v_log_f32", "v_rcp_f32", "v_rsq_f32", "v_sqrt_f32", "v_sin_f32", "v_cos_f32")
def regs_of(tok):
    tok = tok.strip()
    tok = tok.lstrip("-")
    if tok.startswith("abs(") or tok.startswith("neg("): tok = tok[4:-1]
    tok = tok.strip("|")
    m = re.fullmatch(r"([vas])\[(\d+):(\d+)\]", tok)
    if m: return {(m.group(1), i) for i in range(int(m.group(2)), int(m.group(3)) + 1)}
    m = re.fullmatch(r"([vas])(\d+)", tok)
    if m: return {(m.group(1), int(m.group(2)))}
    if tok == "vcc": return {("s", "vcc")}
    if tok == "exec": return {("s", "exec")}
    if tok == "m0": return {("s", "m0")}
    return set()
class Ins:
    def __init__(self, text):
        self.text = text
        t = text.split(";")[0].strip()
        p = t.split(None, 1)
        self.op = p[0]
        rest = p[1] if len(p) > 1 else ""
        ops = [x.strip() for x in re.split(r",(?![^\[]*\])", rest)] if rest else []
        if ops:
            last = ops[-1].split()
            self.mods = " ".join(last[1:]); ops[-1] = last[0]
        else: self.mods = ""
        self.ops = ops
        op = self.op.replace("_e32", "").replace("_e64", "").replace("_dpp", "")
        self.base = op
        self.kind = "other"; self.w = set(); self.r = set(); self.srcC = set(); self.passes = 0
        self.dpp = "quad_perm" in text or "row_" in text
        R = [regs_of(o) for o in ops]
        if op.startswith("v_mfma"):
            self.kind = "mfma"; self.w = R[0]; self.r = R[1] | R[2] | R[3]; self.srcAB = R[1] | R[2]; self.srcC = R[3]
            self.passes = 8 if "32x32x16" in op else 4
        elif op.startswith("v_cmp"):
            self.kind = "valu"; self.w = R[0]; self.r = set().union(*R[1:])
        elif op in ("v_readfirstlane_b32", "v_readlane_b32"):
            self.kind = "valu"; self.w = R[0]; self.r = set().union(*R[1:])
        elif op.startswith("v_permlane"):
            self.kind = "valu"; self.w = R[0] | R[1]; self.r = R[0] | R[1]
        elif op.startswith("v_"):
            self.kind = "trans" if op in TRANS else "valu"
            self.w = R[0]; self.r = set().union(*R[1:]) if len(R) > 1 else set()
            if op in ("v_add_co_u32", "v_addc_co_u32", "v_sub_co_u32"): self.w = R[0] | R[1]; self.r = set().union(*R[2:])
            if op.startswith("v_fmac") or op.startswith("v_dot2c") or self.dpp: self.r |= R[0]
            if op == "v_cndmask_b32" and len(ops) == 3: self.r |= {("s", "vcc")}
        elif op.startswith("ds_read") or op.startswith("ds_bpermute") or op.startswith("ds_swizzle"):
            self.kind = "ds"; self.w = R[0]; self.r = set().union(*R[1:])
        elif op.startswith("ds_write"):
            self.kind = "ds"; self.r = set().union(*R)
        elif op.startswith("buffer_load") or op.startswith("global_load"):
            self.kind = "vmem"
            if " lds" in " " + self.mods or "_lds_" in op:
                self.r = set().union(*R) | {("s", "m0")}; self.dma = True
            else:
                self.w = R[0]; self.r = set().union(*R[1:])
                if "d16" in op: self.r |= R[0]
        elif op.startswith("buffer_store") or op.startswith("global_store") or op.startswith("buffer_atomic") or op.startswith("global_atomic"):
            self.kind = "vmem"; self.r = set().union(*R)
            self.wide = op.endswith("x4") or op.endswith("x3")
            self.data = R[0] if op.startswith("buffer") else R[1]
        elif op.startswith("s_"):
            self.kind = "salu"
            if op.startswith("s_cmp") or op.startswith("s_bitcmp") or op in ("s_waitcnt", "s_barrier", "s_nop", "s_endpgm", "s_setprio", "s_sleep") or op.startswith("s_cbranch") or op == "s_branch":
                self.r = set().union(*R) if R else set()
            else:
                self.w = R[0] if R else set(); self.r = set().union(*R[1:]) if len(R) > 1 else set()
                if "saveexec" in op: self.w |= {("s", "exec")}
        self.states = 1
        if op == "s_nop": self.states = int(ops[0], 0) + 1
def need(p, c):
    n = 0
    pv = p.kind in ("valu", "trans"); cv = c.kind in ("valu", "trans")
    vw = {x for x in p.w if x[0] in "va"}; sw = {x for x in p.w if x[0] == "s"}
    if pv:
        if c.kind == "mfma" and vw & c.r: n = max(n, 2)
        if cv and c.dpp and vw & c.r: n = max(n, 2)
        if c.base.startswith("v_permlane") and vw & c.r: n = max(n, 2)
        if c.base in ("v_readfirstlane_b32", "v_readlane_b32") and vw & c.r: n = max(n, 1)
        if p.kind == "trans" and (c.kind in ("valu", "mfma")) and vw & c.r: n = max(n, 1)
        if sw:
            if c.kind == "vmem" and sw & c.r: n = max(n, 5)
            if cv and sw & c.r: n = max(n, 2)
            if c.base in ("v_readlane_b32", "v_writelane_b32") and sw & c.r: n = max(n, 4)
            if c.kind == "salu" and sw & c.r: n = max(n, 1)
    if p.kind == "mfma":
        long = {4: 8, 8: 12}[p.passes]
        if c.kind == "mfma":
            if p.w & c.srcAB: n = max(n, long)
            if p.w & c.srcC and not (p.w == c.srcC and p.passes == c.passes): n = max(n, {4: 6, 8: 10}[p.passes])
            if p.w & c.w and not (p.w == c.srcC and p.passes == c.passes) : n = max(n, {4: 6, 8: 10}[p.passes])
        elif cv or c.kind in ("ds", "vmem"):
            if p.w & (c.r | c.w): n = max(n, long)
            if p.srcC & c.w: n = max(n, {4: 3, 8: 7}[p.passes])
    if p.kind == "salu" and ("s", "m0") in p.w and getattr(c, "dma", False): n = max(n, 1)
    if p.kind == "salu" and ("s", "exec") in p.w and cv and c.dpp: n = max(n, 1)
    if p.kind == "vmem" and getattr(p, "wide", False) and p.data & c.w: n = max(n, 2)
    if p.kind == "ds" and p.base.startswith("ds_write") and False: pass
    return n
class Asm:
    def __init__(self):
        self.lines = []; self.hist = []; self.pads = 0
    def raw(self, s): self.lines.append(s)
    def label(self, s):
        self.lines.append(s + ":")
    def __call__(self, text):
        ins = Ins(text)
        dist = 0; pad = 0
        for p in reversed(self.hist[-24:]):
            pad = max(pad, need(p, ins) - dist)
            dist += p.states
            if dist >= 20: break
        if pad > 0:
            self.pads += pad
            nop = Ins(f"s_nop {pad-1}"); self.hist.append(nop); self.lines.append("    " + nop.text)
        self.hist.append(ins); self.lines.append("    " + text)
    def fence(self):
        self("s_nop 15")
    def text(self): return "\n".join(self.lines) + "\n"
def v(b, n=1): return f"v{b}" if n == 1 else f"v[{b}:{b+n-1}]"
def a(b, n=1): return f"a{b}" if n == 1 else f"a[{b}:{b+n-1}]"
def s(b, n=1): return f"s{b}" if n == 1 else f"s[{b}:{b+n-1}]"
import struct
def f32(x): return "0x%08x" % struct.unpack("<I", struct.pack("<f", x))[0]
def kernel_head(A, name):
    A.raw(".text"); A.raw(f".globl {name}"); A.raw(".p2align 8"); A.raw(f".type {name},@function"); A.raw(f"{name}:")
    A.hist = []
def kernel_desc(A, name, vgpr, accum, sgpr=102):
    A.raw('.section .rodata,"a"'); A.raw(".p2align 6"); A.raw(f".amdhsa_kernel {name}")
    A.raw(f"  .amdhsa_next_free_vgpr {vgpr}"); A.raw(f"  .amdhsa_next_free_sgpr {sgpr}"); A.raw(f"  .amdhsa_accum_offset {accum}")
    A.raw("  .amdhsa_group_segment_fixed_size 0"); A.raw("  .amdhsa_kernarg_size 80"); A.raw("  .amdhsa_user_sgpr_count 2")
    A.raw("  .amdhsa_user_sgpr_kernarg_segment_ptr 1"); A.raw("  .amdhsa_system_sgpr_workgroup_id_x 1")
    A.raw("  .amdhsa_float_denorm_mode_32 3")
    A.raw(".end_amdhsa_kernel")
def srd(A, d, base, size):
    A(f"s_mov_b32 s{d}, s{base}"); A(f"s_mov_b32 s{d+1}, s{base+1}"); A(f"s_mov_b32 s{d+2}, {size}"); A(f"s_mov_b32 s{d+3}, 0x20000")
```

```python
import sys, math
from asmlib import *
NAME = "parallel_sum__spectral_gfnet__dense_activation_mish__prompt"
XS_OFF, TP_OFF, TN_OFF, UN_OFF, U_OFF, P_OFF = 0, 0x240000, 0x480000, 0x482000, 0x490000, 0x700000
WS_SIZE = P_OFF + 16 * 0x240000
STAMP_OFF = 0x3000000
XB = 2048 * 576 * 2
WB = 2048 * 289 * 2
W1B = 576 * 4608 * 2
LOG2E = 1.4426950408889634
LN2 = 0.6931471805599453
M32 = "v_mfma_f32_32x32x16_bf16"
M16 = "v_mfma_f32_16x16x32_bf16"
STAMPS = False

def stamp_begin(A):
    if STAMPS:
        A("s_memrealtime s[80:81]"); A("s_memtime s[84:85]")
def stamp_end(A, kidx, wsreg, tag):
    if STAMPS:
        A("s_waitcnt vmcnt(0) lgkmcnt(0)"); A("s_barrier")
        A("s_memrealtime s[82:83]"); A("s_memtime s[86:87]"); A("s_waitcnt lgkmcnt(0)")
        A("s_mov_b64 exec, 1")
        for i in range(8): A(f"v_mov_b32 v{4+i}, s{80+i}")
        A(f"s_lshl_b32 s88, s2, 5"); A(f"s_add_u32 s88, s88, {STAMP_OFF + kidx*16384}"); A("v_mov_b32 v3, s88")
        A(f"global_store_dwordx4 v3, v[4:7], s[{wsreg}:{wsreg+1}]"); A(f"global_store_dwordx4 v3, v[8:11], s[{wsreg}:{wsreg+1}] offset:16")

def emit_pi(A, d, src, t):
    A(f"v_and_b32 v{d}, 3, v{src}")
    A(f"v_bfe_u32 v{t}, v{src}, 3, 2"); A(f"v_lshl_add_u32 v{d}, v{t}, 2, v{d}")
    A(f"v_bfe_u32 v{t}, v{src}, 2, 1"); A(f"v_lshl_add_u32 v{d}, v{t}, 4, v{d}")
def emit_kap2(A, d, src, t):
    A(f"v_and_b32 v{t}, 15, v{src}"); A(f"v_lshrrev_b32 v{d}, 4, v{src}"); A(f"v_lshl_add_u32 v{d}, v{t}, 1, v{d}")

def gen_frag(A, dst_c, dst_s, consts, vfreq, vbase, t, negsin):
    for j, c in enumerate(consts):
        if c == 0: A(f"v_mov_b32 v{t+j}, v{vbase}")
        else: A(f"v_fmamk_f32 v{t+j}, v{vfreq}, {f32(c)}, v{vbase}")
    for j in range(8):
        A(f"v_cos_f32 v{t+8+j}, v{t+j}")
        if negsin: A(f"v_sin_f32_e64 v{t+16+j}, -v{t+j}")
        else: A(f"v_sin_f32 v{t+16+j}, v{t+j}")
    for j in range(4):
        A(f"v_cvt_pk_bf16_f32 v{dst_c+j}, v{t+8+2*j}, v{t+9+2*j}")
        A(f"v_cvt_pk_bf16_f32 v{dst_s+j}, v{t+16+2*j}, v{t+17+2*j}")
CH = [0, 1, 2, 3, 8, 9, 10, 11]

def k0(A):
    name = "pre_kernel"
    kernel_head(A, name)
    A("s_cmp_ge_u32 s2, 192"); A("s_cbranch_scc1 L0_end")
    stamp_begin(A)
    A("s_load_dwordx2 s[4:5], s[0:1], 0"); A("s_load_dwordx2 s[6:7], s[0:1], 72")
    A("s_and_b32 s16, s2, 63")
    A("s_lshr_b32 s17, s2, 6")
    A("v_lshrrev_b32 v1, 3, v0")
    A("v_and_b32 v2, 7, v0")
    A("v_mul_u32_u24 v3, 73728, v1"); A("v_lshl_add_u32 v3, v2, 4, v3")
    A("s_mul_i32 s18, s16, 1152")
    A("v_lshrrev_b32 v4, 6, v0"); A("v_readfirstlane_b32 s19, v4")
    A("s_waitcnt lgkmcnt(0)")
    srd(A, 8, 4, XB); srd(A, 12, 6, WS_SIZE)
    X = 16
    for i in range(9):
        A(f"buffer_load_dwordx4 {v(X+4*i,4)}, v3, s[8:11], s18 offen offset:{128*i}")
    T = 124
    A("v_and_b32 v5, 31, v0")
    A("v_bfe_u32 v6, v0, 5, 1")
    A("s_cmp_eq_u32 s19, 3"); A("s_cbranch_scc1 L0_ln")
    emit_pi(A, 7, 5, 9); emit_pi(A, 8, 7, 9); emit_kap2(A, 7, 8, 9)
    A("s_mul_i32 s20, s17, 3"); A("s_add_u32 s20, s20, s19")
    A("s_lshl_b32 s21, s20, 5"); A("v_add_u32 v7, s21, v7")
    A("v_and_b32 v8, 1, v7"); A("v_lshlrev_b32 v8, 31, v8"); A("v_or_b32 v10, 1.0, v8")
    A("v_cvt_f32_u32 v7, v7"); A(f"v_mul_f32 v7, {f32(1.0/576)}, v7")
    A("v_cvt_f32_u32 v8, v6"); A("v_mul_f32 v8, 0x41000000, v8"); A("v_mul_f32 v8, v8, v7")
    for kk in range(18):
        gen_frag(A, T+24, T+28, [16*kk + j for j in range(8)], 7, 8, T, True)
        for j in range(4):
            A(f"v_accvgpr_write_b32 a{4*kk+j}, v{T+24+j}"); A(f"v_accvgpr_write_b32 a{72+4*kk+j}, v{T+28+j}")
    A("s_cmp_lg_u32 s20, 0"); A("s_cbranch_scc1 L0_nopatch")
    A("s_mov_b32 exec_lo, 1"); A("s_mov_b32 exec_hi, 1")
    A("v_mov_b32 v9, 0xbf803f80")
    for i in range(72): A(f"v_accvgpr_write_b32 a{72+i}, v9")
    A("s_mov_b64 exec, -1")
    A.label("L0_nopatch")
    MR, MI, MN = 156, 164, 172
    A("v_cvt_f32_u32 v7, v5"); A(f"v_mul_f32 v7, {f32(1.0/32)}, v7")
    A("v_lshlrev_b32 v8, 8, v6"); A("v_add_u32 v8, s16, v8"); A("v_cvt_f32_u32 v8, v8")
    A(f"v_mul_f32 v8, {f32(1.0/64)}, v8"); A("v_mul_f32 v8, v8, v7")
    for ks in range(2):
        gen_frag(A, MR+4*ks, MI+4*ks, [16*ks + c for c in CH], 7, 8, T, True)
    for i in range(8): A(f"v_xor_b32 v{MN+i}, 0x80008000, v{MI+i}")
    A.label("L0_ln")
    Fx = 52
    A("v_mov_b32 v12, 0"); A("v_mov_b32 v13, 0"); A("v_mov_b32 v14, 0"); A("v_mov_b32 v15, 0")
    for i in range(9):
        A(f"s_waitcnt vmcnt({8-i})")
        for q in range(4):
            w = X + 4*i + q; f = Fx + 2*(4*i+q)
            A(f"v_lshlrev_b32 v{f}, 16, v{w}"); A(f"v_and_b32 v{f+1}, 0xffff0000, v{w}")
        for q in range(4):
            f = Fx + 2*(4*i+q); acc = 12 + 2*(q & 1)
            A(f"v_pk_add_f32 {v(acc,2)}, {v(acc,2)}, {v(f,2)}")
    def red8(r):
        for m in ("quad_perm:[1,0,3,2]", "quad_perm:[2,3,0,1]", "row_half_mirror"):
            A(f"v_add_f32_dpp v{r}, v{r}, v{r} {m} row_mask:0xf bank_mask:0xf")
    A("v_pk_add_f32 v[12:13], v[12:13], v[14:15]"); A("v_add_f32 v12, v12, v13")
    red8(12)
    A(f"v_mul_f32 v12, {f32(1.0/576)}, v12")
    A("v_cvt_pk_bf16_f32 v14, v12, v12"); A("v_lshlrev_b32 v14, 16, v14"); A("v_mov_b32 v15, v14")
    A("v_sub_f32 v11, v12, v14")
    for r in range(T, T+4): A(f"v_mov_b32 v{r}, 0")
    for i in range(36):
        f = Fx + 2*i
        A(f"v_pk_add_f32 {v(f,2)}, {v(f,2)}, v[14:15] neg_lo:[0,1] neg_hi:[0,1]")
    for i in range(36):
        f = Fx + 2*i; acc = T + 2*(i & 1)
        A(f"v_pk_fma_f32 {v(acc,2)}, {v(f,2)}, {v(f,2)}, {v(acc,2)}")
        A(f"v_cvt_pk_bf16_f32 v{X+i}, v{f}, v{f+1}")
    A(f"v_pk_add_f32 v[12:13], {v(T,2)}, {v(T+2,2)}"); A("v_add_f32 v12, v12, v13")
    red8(12)
    A(f"v_mul_f32 v12, {f32(1.0/576)}, v12"); A("v_fma_f32 v12, -v11, v11, v12"); A("v_max_f32 v12, 0, v12")
    def rnd(r): A(f"v_cvt_pk_bf16_f32 v{r}, v{r}, v{r}"); A(f"v_lshlrev_b32 v{r}, 16, v{r}")
    rnd(12); A(f"v_add_f32 v12, {f32(1e-5)}, v12"); rnd(12); A("v_sqrt_f32 v12, v12"); rnd(12)
    A("v_rcp_f32 v12, v12"); A("v_mov_b32 v13, v12")
    A(f"v_mul_f32 v14, {f32(LOG2E)}, v12"); A("v_mov_b32 v15, v14")
    A("v_mul_u32_u24 v11, 528, v2"); A("v_lshl_add_u32 v11, v1, 4, v11")
    for i in range(9):
        for q in range(4):
            w = X + 4*i + q; f = Fx + 2*(4*i+q)
            A(f"v_lshlrev_b32 v{f}, 16, v{w}"); A(f"v_and_b32 v{f+1}, 0xffff0000, v{w}")
        for q in range(4):
            f = Fx + 2*(4*i+q)
            A(f"v_pk_mul_f32 {v(T+2*q,2)}, {v(f,2)}, v[12:13]")
        for q in range(4):
            A(f"v_cvt_pk_bf16_f32 v{X+4*i+q}, v{T+2*q}, v{T+2*q+1}")
        A(f"ds_write_b128 v11, {v(X+4*i,4)} offset:{8*528*i}")
    A("v_lshlrev_b32 v9, 9, v2"); A("v_lshl_add_u32 v9, v1, 4, v9")
    A("s_mul_i32 s22, s16, 36864"); A("s_mul_i32 s23, s17, 12288"); A("s_add_u32 s22, s22, s23")
    if XS_OFF: A(f"s_add_u32 s22, s22, {XS_OFF}")
    for t in range(3):
        if t < 2:
            A(f"s_cmp_lg_u32 s17, {t}"); A(f"s_cbranch_scc1 L0_xs{t+1}")
        for ii in range(3):
            i = 3*t + ii
            for q in range(4):
                f = Fx + 2*(4*i+q)
                A(f"v_pk_mul_f32 {v(f,2)}, {v(f,2)}, v[14:15]")
            for q in range(4):
                f = Fx + 2*(4*i+q)
                A(f"v_cvt_pk_bf16_f32 v{T+8+4*ii+q}, v{f}, v{f+1}")
            A(f"buffer_store_dwordx4 {v(T+8+4*ii,4)}, v9, s[12:15], s22 offen sc1")
            if ii < 2: A("s_add_u32 s22, s22, 4096")
        if t < 2:
            A("s_branch L0_xsd"); A.label(f"L0_xs{t+1}")
    A.label("L0_xsd")
    A("s_waitcnt lgkmcnt(0)"); A("s_barrier")
    A("s_cmp_eq_u32 s19, 3"); A("s_cbranch_scc1 L0_fin")
    A("v_mul_u32_u24 v11, 528, v6"); A("v_lshl_add_u32 v11, v5, 4, v11")
    R1, I1, R2, I2 = 180, 196, 212, 228
    AF = 16
    order = []
    for kk in range(18): order += [kk, kk + 18]
    for n in range(6): A(f"ds_read_b128 {v(AF+4*n,4)}, v11 offset:{1056*order[n]}")
    for n, kk in enumerate(order):
        if n + 6 < 36: A(f"ds_read_b128 {v(AF+4*((n+6)%8),4)}, v11 offset:{1056*order[n+6]}")
        A(f"s_waitcnt lgkmcnt({min(6, 35-n)})")
        accr, acci = (R1, I1) if kk < 18 else (R2, I2)
        kb = kk % 18
        A(f"{M32} {v(accr,16)}, {v(AF+4*(n%8),4)}, {a(4*kb,4)}, {'0' if kb == 0 else v(accr,16)}")
        A(f"{M32} {v(acci,16)}, {v(AF+4*(n%8),4)}, {a(72+4*kb,4)}, {'0' if kb == 0 else v(acci,16)}")
    ZR, ZI = 52, 60
    for i in range(16): A(f"v_fmac_f32 v{R1+i}, v10, v{R2+i}")
    for i in range(8): A(f"v_cvt_pk_bf16_f32 v{ZR+i}, v{R1+2*i}, v{R1+2*i+1}")
    for i in range(16): A(f"v_fmac_f32 v{I1+i}, v10, v{I2+i}")
    for i in range(8): A(f"v_cvt_pk_bf16_f32 v{ZI+i}, v{I1+2*i}, v{I1+2*i+1}")
    AR, AI, TR, TI = 68, 84, 100, 116
    A(f"{M32} {v(AR,16)}, {v(ZR,4)}, {v(MR,4)}, 0"); A(f"{M32} {v(AI,16)}, {v(ZR,4)}, {v(MI,4)}, 0")
    A(f"{M32} {v(AR,16)}, {v(ZR+4,4)}, {v(MR+4,4)}, {v(AR,16)}"); A(f"{M32} {v(AI,16)}, {v(ZR+4,4)}, {v(MI+4,4)}, {v(AI,16)}")
    A(f"{M32} {v(TR,16)}, {v(ZI,4)}, {v(MN,4)}, {v(AR,16)}"); A(f"{M32} {v(TI,16)}, {v(ZI,4)}, {v(MR,4)}, {v(AI,16)}")
    A(f"{M32} {v(TR,16)}, {v(ZI+4,4)}, {v(MN+4,4)}, {v(TR,16)}"); A(f"{M32} {v(TI,16)}, {v(ZI+4,4)}, {v(MR+4,4)}, {v(TI,16)}")
    A("v_mul_u32_u24 v9, 73728, v5"); A("v_lshl_add_u32 v9, v6, 5, v9")
    A("s_lshl_b32 s22, s20, 7"); A("s_add_u32 s22, s22, s18"); A(f"s_add_u32 s22, s22, {TP_OFF}")
    A("s_nop 7")
    A("s_cmp_lg_u32 s20, 0"); A("s_cbranch_scc1 L0_nonyq")
    A("s_mov_b32 exec_hi, 0")
    A(f"v_sub_f32 v7, v{TI}, v{AI}"); A(f"v_sub_f32 v8, v{AR}, v{TR}")
    A(f"v_mov_b32 v{TR}, v{AR}"); A(f"v_mov_b32 v{TI}, v{AI}")
    A("v_cvt_pk_bf16_f32 v7, v7, v8"); A("v_lshlrev_b32 v8, 1, v5")
    A("s_lshl_b32 s23, s16, 7"); A(f"s_add_u32 s23, s23, {TN_OFF}")
    A("buffer_store_short v7, v8, s[12:15], s23 offen sc1"); A("buffer_store_short_d16_hi v7, v8, s[12:15], s23 offen offset:64 sc1")
    A("s_mov_b32 exec_hi, -1")
    A.label("L0_nonyq")
    for i in range(8): A(f"v_cvt_pk_bf16_f32 v{16+i}, v{TR+2*i}, v{TR+2*i+1}")
    A(f"buffer_store_dwordx4 v[16:19], v9, s[12:15], s22 offen sc1"); A(f"buffer_store_dwordx4 v[20:23], v9, s[12:15], s22 offen offset:16 sc1")
    for i in range(8): A(f"v_cvt_pk_bf16_f32 v{24+i}, v{TI+2*i}, v{TI+2*i+1}")
    A(f"buffer_store_dwordx4 v[24:27], v9, s[12:15], s22 offen offset:64 sc1"); A(f"buffer_store_dwordx4 v[28:31], v9, s[12:15], s22 offen offset:80 sc1")
    A.label("L0_fin")
    stamp_end(A, 0, 6, "k0")
    A.label("L0_end"); A("s_endpgm")
    return (name, (192, 256, 72 * 528), 256 + 144, 256)

def kmid(A):
    name = "mid_kernel"
    kernel_head(A, name)
    A("s_cmp_ge_u32 s2, 73"); A("s_cbranch_scc1 L1_end")
    stamp_begin(A)
    A("s_load_dwordx4 s[4:7], s[0:1], 8"); A("s_load_dwordx2 s[24:25], s[0:1], 72")
    A("v_lshrrev_b32 v4, 6, v0"); A("v_readfirstlane_b32 s19, v4")
    A("s_lshl_b32 s26, s2, 2"); A("s_add_u32 s26, s26, s19")
    A("s_cmp_ge_u32 s26, 289"); A("s_cbranch_scc1 L1_fin")
    A(f"s_mul_i32 s27, s26, {(65536 + 8) // 9}"); A("s_lshr_b32 s27, s27, 16")
    A("s_mul_i32 s28, s27, 9"); A("s_sub_u32 s28, s26, s28")
    A("v_and_b32 v1, 63, v0"); A("v_and_b32 v5, 31, v0"); A("v_bfe_u32 v6, v0, 5, 1")
    A("s_mul_i32 s29, s27, 73728"); A("s_lshl_b32 s30, s28, 7"); A("s_add_u32 s29, s29, s30"); A(f"s_add_u32 s29, s29, {TP_OFF}")
    A("s_mov_b32 s31, 1152")
    A("s_mul_i32 s32, s27, 1152"); A("s_add_u32 s32, s32, s30"); A(f"s_add_u32 s32, s32, {U_OFF}")
    A("s_mov_b32 s33, 36864")
    emit_pi(A, 7, 5, 9); emit_kap2(A, 8, 7, 9)
    A("s_lshl_b32 s34, s28, 6"); A("s_mul_i32 s35, s27, 578"); A("s_add_u32 s34, s34, s35")
    A("v_lshlrev_b32 v8, 1, v8"); A("v_add_u32 v8, s34, v8")
    A("s_cmp_lg_u32 s26, 288"); A("s_cbranch_scc1 L1_norm")
    A(f"s_mov_b32 s29, {TN_OFF}"); A("s_mov_b32 s31, 128"); A(f"s_mov_b32 s32, {UN_OFF}"); A("s_mov_b32 s33, 128")
    A("v_mul_u32_u24 v8, 578, v5"); A("v_add_u32 v8, 576, v8")
    A.label("L1_norm")
    A(f"v_mul_u32_u24 v9, {128*578}, v6"); A("v_add_u32 v8, v8, v9")
    A("s_waitcnt lgkmcnt(0)")
    srd(A, 8, 4, WB); srd(A, 12, 6, WB); srd(A, 20, 24, WS_SIZE)
    A("v_lshrrev_b32 v2, 3, v1"); A("v_bfe_u32 v3, v1, 4, 1"); A("v_lshlrev_b32 v3, 2, v3"); A("v_and_b32 v7, 7, v1"); A("v_xor_b32 v3, v3, v7")
    A("v_mul_lo_u32 v2, v2, s31"); A("v_lshl_add_u32 v2, v3, 4, v2")
    A("s_lshl_b32 s36, s19, 13"); A("s_lshl_b32 s37, s31, 3")
    for i in range(8):
        A(f"s_add_u32 m0, s36, {1024*i}")
        A("buffer_load_dwordx4 v2, s[20:23], s29 offen lds")
        A("s_add_u32 s29, s29, s37")
    WR, WI = 16, 48
    for i in range(64): A(f"v_mov_b32 v{WR+i}, 0")
    for mt in range(2):
        for r in range(16):
            j2 = 32*mt + 8*(r >> 2) + (r & 3)
            A(f"s_mov_b32 s38, {18496*j2}")
            A(f"buffer_load_short_d16_hi v{WR+16*mt+r}, v8, s[8:11], s38 offen")
            A(f"buffer_load_short_d16_hi v{WI+16*mt+r}, v8, s[12:15], s38 offen")
            if mt == 1 and r >= 8 and False: pass
    C, S_, N_, T = 80, 112, 144, 176
    A("v_cvt_f32_u32 v10, v5"); A(f"v_mul_f32 v10, {f32(1.0/64)}, v10")
    A("v_cvt_f32_u32 v11, v6"); A("v_mul_f32 v11, 4.0, v11"); A("v_mul_f32 v11, v11, v10")
    for ks in range(2):
        gen_frag(A, C+4*ks, S_+4*ks, [16*ks + c for c in CH], 10, 11, T, False)
    A("v_and_b32 v12, 1, v5"); A("v_mul_u32_u24 v12, 0x8000, v12"); A("v_lshl_add_u32 v12, v12, 16, v12")
    for base in (C, S_):
        for i in range(8): A(f"v_xor_b32 v{base+8+i}, v12, v{base+i}")
        for i in range(16): A(f"v_xor_b32 v{base+16+i}, 0x80000000, v{base+i}")
    for i in range(32): A(f"v_xor_b32 v{N_+i}, 0x80008000, v{S_+i}")
    A("v_bfe_u32 v2, v1, 2, 2"); A("v_lshl_add_u32 v2, v6, 2, v2")
    A("v_bfe_u32 v3, v1, 3, 1"); A("v_lshlrev_b32 v3, 6, v3")
    A("v_lshl_add_u32 v2, v2, 7, v3")
    A("v_bfe_u32 v3, v1, 4, 1"); A("v_lshl_add_u32 v2, v3, 5, v2")
    A("v_and_b32 v3, 3, v1"); A("v_lshl_add_u32 v2, v3, 3, v2")
    A("v_add_u32 v2, s36, v2"); A("v_xor_b32 v3, 64, v2")
    TRr, TIi = 176, 192
    A("s_waitcnt vmcnt(60)")
    for ks in range(4):
        for e in range(2):
            A(f"ds_read_b64_tr_b16 {v(TRr+4*ks+2*e,2)}, v2 offset:{2048*ks+1024*e}")
            A(f"ds_read_b64_tr_b16 {v(TIi+4*ks+2*e,2)}, v3 offset:{2048*ks+1024*e}")
    A("s_waitcnt lgkmcnt(0)")
    def acc(i): return a(16*i, 16)
    for mt in range(2):
        xr, xi = acc(2*mt), acc(2*mt+1)
        for ks in range(4):
            c = v(C+16*mt+4*ks, 4); sn = v(S_+16*mt+4*ks, 4); nn = v(N_+16*mt+4*ks, 4)
            A(f"{M32} {xr}, {c}, {v(TRr+4*ks,4)}, {'0' if ks == 0 else xr}")
            A(f"{M32} {xi}, {c}, {v(TIi+4*ks,4)}, {'0' if ks == 0 else xi}")
            A(f"{M32} {xr}, {sn}, {v(TIi+4*ks,4)}, {xr}")
            A(f"{M32} {xi}, {nn}, {v(TRr+4*ks,4)}, {xi}")
    A("s_waitcnt vmcnt(0)")
    YR, YI = 208, 224
    for mt in range(2):
        for r in range(0, 16, 2):
            for e in range(2):
                i = 16*mt + r + e
                A(f"v_accvgpr_read_b32 v{240+e}, a{32*mt+r+e}"); A(f"v_accvgpr_read_b32 v{242+e}, a{32*mt+16+r+e}")
                A(f"v_mul_f32 v{244+e}, v{240+e}, v{WR+i}"); A(f"v_mul_f32 v{246+e}, v{240+e}, v{WI+i}")
                A(f"v_fma_f32 v{244+e}, -v{242+e}, v{WI+i}, v{244+e}"); A(f"v_fmac_f32 v{246+e}, v{242+e}, v{WR+i}")
            A(f"v_cvt_pk_bf16_f32 v{YR+8*mt+r//2}, v244, v245"); A(f"v_cvt_pk_bf16_f32 v{YI+8*mt+r//2}, v246, v247")
    UA = 16
    for nt in range(2):
        ur, ui = v(UA+32*nt, 16), v(UA+32*nt+16, 16)
        for ks in range(4):
            c = v(C+16*nt+4*ks, 4); sn = v(S_+16*nt+4*ks, 4); nn = v(N_+16*nt+4*ks, 4)
            A(f"{M32} {ur}, {v(YR+4*ks,4)}, {c}, {'0' if ks == 0 else ur}")
            A(f"{M32} {ui}, {v(YI+4*ks,4)}, {c}, {'0' if ks == 0 else ui}")
            A(f"{M32} {ur}, {v(YI+4*ks,4)}, {nn}, {ur}")
            A(f"{M32} {ui}, {v(YR+4*ks,4)}, {sn}, {ui}")
    A("v_mul_lo_u32 v9, v5, s33"); A("v_lshl_add_u32 v9, v6, 5, v9")
    A("s_lshl_b32 s37, s33, 5")
    for nt in range(2):
        for part in range(2):
            b = UA + 32*nt + 16*part; o = 176 + 16*nt + 8*part
            for i in range(8): A(f"v_cvt_pk_bf16_f32 v{o+i}, v{b+2*i}, v{b+2*i+1}")
            A(f"buffer_store_dwordx4 {v(o,4)}, v9, s[20:23], s32 offen offset:{64*part} sc1")
            A(f"buffer_store_dwordx4 {v(o+4,4)}, v9, s[20:23], s32 offen offset:{64*part+16} sc1")
        if nt == 0: A("s_add_u32 s32, s32, s37")
    A.label("L1_fin")
    A("s_waitcnt lgkmcnt(0)")
    stamp_end(A, 1, 24, "mid")
    A.label("L1_end"); A("s_endpgm")
    return (name, (73, 256, 32768), 256 + 64, 256)

def build(kernels, path):
    A = Asm()
    body = Asm()
    infos = [k(body) for k in kernels]
    hdr = open("cdna_kernels/" + NAME + ".s.ref").read().split("; Override launch")[0]
    out = hdr
    for name, (g, b, lds), vg, acc in infos:
        out += f"; @launch kernel={name} grid=({g},1,1) block=({b},1,1) lds={lds}\n"
    out += '.amdgcn_target "amdgcn-amd-amdhsa--gfx950"\n'
    for name, _, vg, acc in infos: kernel_desc(body, name, vg, acc)
    open(path, "w").write(out + body.text())
    print(path, "pads", body.pads, "lines", len(body.lines))

if __name__ == "__main__":
    build([k0, kmid], "t01.s")
```

```python
from asmlib import *
import gen as G
from gen import M32, M16, f32

class Cfg:
    R = 36
    P = 3
    LA = 6
    NF = 8
    WP = 2
    xmap = "16x2"
    store_flag = "sc1"

def k1(A, cfg=Cfg):
    name = "mlp_kernel"
    R, P, LA, NF = cfg.R, cfg.P, cfg.LA, cfg.NF
    BIAS = R * 4096
    kernel_head(A, name)
    A("s_cmp_ge_u32 s2, 256"); A("s_cbranch_scc1 L2_end")
    G.stamp_begin(A)
    A("s_load_dwordx4 s[4:7], s[0:1], 32")
    A("s_load_dwordx2 s[24:25], s[0:1], 48")
    A("s_load_dwordx2 s[26:27], s[0:1], 72")
    A("v_lshrrev_b32 v4, 6, v0"); A("v_readfirstlane_b32 s28, v4")
    if cfg.xmap == "16x2":
        A("s_and_b32 s29, s2, 7"); A("s_lshl_b32 s29, s29, 1"); A("s_bfe_u32 s30, s2, 0x10003"); A("s_add_u32 s29, s29, s30")
        A("s_lshr_b32 s30, s2, 4")
    else:
        A("s_bfe_u32 s29, s2, 0x20001"); A("s_lshl_b32 s29, s29, 2"); A("s_lshr_b32 s30, s2, 6"); A("s_add_u32 s29, s29, s30")
        A("s_and_b32 s30, s2, 1"); A("s_lshl_b32 s30, s30, 3"); A("s_bfe_u32 s31, s2, 0x30003"); A("s_add_u32 s30, s30, s31")
    A("s_lshl_b32 s30, s30, 2"); A("s_add_u32 s30, s30, s28")
    A("s_and_b32 s31, s29, 1")
    A("s_mul_i32 s32, s29, 576")
    A("s_lshl_b32 s33, s31, 6"); A("s_add_u32 s33, s33, s32")
    A("s_lshl_b32 s34, s31, 9"); A("s_sub_u32 s34, 512, s34"); A("s_add_u32 s34, s34, s32")
    A(f"s_mul_i32 s35, s29, {288*1152}")
    A(f"s_mul_i32 s36, s31, {32*1152}"); A("s_add_u32 s36, s36, s35")
    A(f"s_mul_i32 s37, s31, {256*1152}"); A(f"s_sub_u32 s37, {256*1152}, s37"); A("s_add_u32 s37, s37, s35")
    A("s_lshl_b32 s38, s28, 10")
    A("s_mul_i32 s39, s30, 36864")
    A(f"s_mul_i32 s40, s29, {0x240000}"); A("s_add_u32 s40, s40, s39"); A(f"s_add_u32 s40, s40, {G.P_OFF}")
    if G.XS_OFF: A(f"s_add_u32 s39, s39, {G.XS_OFF}")
    VL16, VW1, VWH, VW2, VBI = 1, 2, 3, 5, 6
    AD = 8
    C1, C2 = 23, 24
    TMP = 28
    STG = 44
    ACT = 60
    ACC = 132
    FR = 144
    A("v_and_b32 v7, 63, v0"); A(f"v_lshlrev_b32 v{VL16}, 4, v7")
    A(f"v_lshrrev_b32 v{TMP}, 3, v0")
    A(f"v_bfe_u32 v{TMP+1}, v0, 4, 1"); A(f"v_lshlrev_b32 v{TMP+1}, 2, v{TMP+1}"); A(f"v_and_b32 v{TMP+2}, 7, v0"); A(f"v_xor_b32 v{TMP+1}, v{TMP+1}, v{TMP+2}")
    A(f"v_mul_u32_u24 v{VW1}, 9216, v{TMP}"); A(f"v_lshl_add_u32 v{VW1}, v{TMP+1}, 4, v{VW1}")
    A(f"v_mul_u32_u24 v{VW2}, 1152, v{TMP}"); A(f"v_lshl_add_u32 v{VW2}, v{TMP+1}, 4, v{VW2}")
    A(f"v_lshrrev_b32 v{TMP}, 2, v0"); A(f"v_and_b32 v{TMP+1}, 3, v0")
    A(f"v_mul_u32_u24 v{VWH}, 9216, v{TMP}"); A(f"v_lshl_add_u32 v{VWH}, v{TMP+1}, 4, v{VWH}")
    A(f"s_lshl_b32 s41, s31, 5"); A(f"v_lshl_add_u32 v{TMP+3}, v0, 1, s41")
    A(f"v_subrev_u32 v{TMP+4}, 288, v{TMP+3}"); A(f"v_min_u32 v{TMP+3}, v{TMP+3}, v{TMP+4}"); A(f"v_lshlrev_b32 v{TMP+3}, 1, v{TMP+3}")
    A("s_waitcnt lgkmcnt(0)")
    srd(A, 8, 4, G.W1B); srd(A, 12, 24, G.W1B); srd(A, 16, 26, G.WS_SIZE); srd(A, 20, 6, 4608 * 2)

    vm = []
    def dma(st):
        if st < 72:
            p, t = divmod(st, 18); base, off, vo, sr = "s33", 128*p + t*32*9216, VW1, 8
        elif st < 81:
            t = st - 72; base, off, vo, sr = "s34", t*64*9216, VWH, 8
        else:
            q, c = stageB[st - 81]
            if c < 8: base, off = "s36", c*32*1152 + 128*q
            else: base, off = "s37", 128*q
            vo, sr = VW2, 12
        return [f"s_add_u32 m0, s38, {(st % R) * 4096}", f"s_add_u32 s42, {base}, {off}", (f"buffer_load_dwordx4 v{vo}, s[{sr}:{sr+3}], s42 offen lds", ("dma", st))]
    stageB = [(0, c) for c in range(6)] + [(1, c) for c in range(6)] + [(0, c) for c in range(6, 9)] + [(1, c) for c in range(6, 9)]
    for q in range(2, 9): stageB += [(q, c) for c in range(9)]
    NST = 81 + len(stageB)
    def emit(x):
        if isinstance(x, tuple): A(x[0]); vm.append(x[1])
        else: A(x)
    emit((f"buffer_load_dword v{TMP+5}, v{TMP+3}, s[20:23], s32 offen", ("bias", 0)))
    for t in range(18):
        for x in dma(t): emit(x)
        if t % 2 == 0: A(f"s_add_u32 s43, s39, {2048*t}")
        for kk in (2*t, 2*t+1):
            emit((f"buffer_load_dwordx4 {a(4*kk,4)}, v{VL16}, s[16:19], s43 offen offset:{1024*(kk % 4)}", ("xs", kk)))
    r4, hh, cq, cc, sw = TMP+6, TMP+7, TMP+8, TMP+9, TMP+10
    A(f"v_bfe_u32 v{r4}, v0, 2, 2"); A(f"v_bfe_u32 v{hh}, v0, 5, 1"); A(f"v_bfe_u32 v{cq}, v0, 4, 1"); A(f"v_and_b32 v{cc}, 3, v0")
    A(f"v_bfe_u32 v{sw}, v0, 3, 1"); A(f"v_lshlrev_b32 v{sw}, 6, v{sw}")
    t1, t2 = TMP+11, TMP+12
    A(f"v_lshlrev_b32 v{t2}, 5, v{cq}"); A(f"v_lshl_add_u32 v{t2}, v{cc}, 3, v{t2}")
    A(f"v_lshl_add_u32 v{t1}, v{hh}, 3, v{r4}")
    A(f"v_lshl_add_u32 v{AD}, v{t1}, 7, v{t2}"); A(f"v_add_u32 v{AD}, v{AD}, v{sw}")
    A(f"v_xor_b32 v{AD+3}, 64, v{AD}")
    A(f"v_lshl_add_u32 v{AD+6}, v{t1}, 6, v{t2}")
    A(f"v_lshl_add_u32 v{t1}, v{hh}, 2, v{r4}")
    A(f"v_and_b32 v{t2}, 1, v{cc}"); A(f"v_lshlrev_b32 v{t2}, 5, v{t2}"); A(f"v_lshl_add_u32 v{t2}, v{cq}, 4, v{t2}")
    A(f"v_lshrrev_b32 v{cc}, 1, v{cc}"); A(f"v_lshl_add_u32 v{t2}, v{cc}, 3, v{t2}")
    A(f"v_lshl_add_u32 v{AD+9}, v{t1}, 7, v{t2}"); A(f"v_add_u32 v{AD+9}, v{AD+9}, v{sw}")
    A(f"v_xor_b32 v{AD+12}, 64, v{AD+9}")
    for b in range(5):
        A(f"v_add_u32 v{AD+3*b+1}, 0x10000, v{AD+3*b}"); A(f"v_add_u32 v{AD+3*b+2}, 0x20000, v{AD+3*b}")
    A(f"v_lshlrev_b32 v{VBI}, 4, v{hh}"); A(f"v_add_u32 v{VBI}, {BIAS}, v{VBI}")
    A(f"v_mov_b32 v{C1}, {f32(-2*G.LN2)}"); A(f"v_mov_b32 v{C2}, {f32(G.LN2)}")
    A(f"s_waitcnt vmcnt({len(vm)-1})")
    A(f"v_lshlrev_b32 v{TMP}, 16, v{TMP+5}"); A(f"v_and_b32 v{TMP+1}, 0xffff0000, v{TMP+5}")
    A(f"v_mul_f32 v{TMP}, {f32(G.LOG2E)}, v{TMP}"); A(f"v_mul_f32 v{TMP+1}, {f32(G.LOG2E)}, v{TMP+1}")
    A(f"v_lshlrev_b32 v{TMP+2}, 3, v0"); A(f"v_add_u32 v{TMP+2}, {BIAS}, v{TMP+2}")
    A("v_cmp_gt_u32 vcc, 144, v0"); A("s_and_saveexec_b64 s[44:45], vcc")
    A(f"ds_write_b64 v{TMP+2}, {v(TMP,2)}")
    A("s_mov_b64 exec, s[44:45]")
    A("s_waitcnt lgkmcnt(0)")

    def tile(i): return ACC + 16*i
    slots = []
    for p in range(4):
        for t in range(18):
            for ks in range(2):
                for ch in range(2):
                    slots.append(dict(st=18*p+t, pat=ch, off=2048*ks, de=512, acc=2*(p & 1)+ch, b=a(4*(2*t+ks), 4), xs=2*t+ks,
                                      first=(t == 0 and ks == 0), last=(t == 17 and ks == 1), chunk=2*p+ch, ph="A"))
    for t in range(9):
        for ks in range(4):
            slots.append(dict(st=72+t, pat=2, off=1024*ks, de=256, acc=4, b=a(4*(4*t+ks), 4), first=(t == 0 and ks == 0), last=(t == 8 and ks == 3), chunk=8, ph="A"))
    accB = lambda q: (0 if q == 0 else 5 if q == 1 else 2 if q % 2 == 0 else 0)
    for i, (q, c) in enumerate(stageB):
        for ks in range(2):
            for ch in range(2):
                slots.append(dict(st=81+i, pat=3+ch, off=2048*ks, de=1024, acc=accB(q)+ch, b=v(ACT+8*c+4*ks, 4), first=(c == 0 and ks == 0),
                                  last=(c == 8 and ks == 1), q=q, ch=ch, act=c, ph="B"))
    NS = len(slots)
    jobs = []
    def mish(tl, chunk):
        out = []
        for g4 in range(4):
            x = [tile(tl) + 4*g4 + j for j in range(4)]; t = [TMP + 4*(g4 & 1) + j for j in range(4)]
            out += [f"v_exp_f32 v{t[j]}, v{x[j]}" for j in range(4)]
            out += [f"v_add_f32 v{t[j]}, 1.0, v{t[j]}" for j in range(4)]
            out += [f"v_fma_f32 v{t[j]}, v{t[j]}, v{t[j]}, 1.0" for j in range(4)]
            out += [f"v_rcp_f32 v{t[j]}, v{t[j]}" for j in range(4)]
            out += [f"v_fma_f32 v{t[j]}, v{t[j]}, v{C1}, v{C2}" for j in range(4)]
            out += [f"v_mul_f32 v{t[j]}, v{t[j]}, v{x[j]}" for j in range(4)]
            out += [f"v_cvt_pk_bf16_f32 v{ACT+8*chunk+2*g4+j}, v{t[2*j]}, v{t[2*j+1]}" for j in range(2)]
        return out
    def epi(tl, q, ch):
        out = []
        if ch == 0: out.append(f"s_add_u32 s46, s40, {4096*q}")
        for qq in range(2):
            o = STG + 8*ch + 4*qq
            out += [f"v_cvt_pk_bf16_f32 v{o+j}, v{tile(tl)+8*qq+2*j}, v{tile(tl)+8*qq+2*j+1}" for j in range(4)]
            out.append((f"buffer_store_dwordx4 {v(o,4)}, v{VL16}, s[16:19], s46 offen offset:{2048*ch+1024*qq} {cfg.store_flag}", ("st", q)))
        return out
    first_use = {}
    def next_first(tl, after):
        for i in range(after + 1, NS):
            if slots[i]["acc"] == tl and slots[i]["first"]: return i
        return NS + 1000
    def act_need(chunk):
        for i in range(NS):
            if slots[i].get("act") == chunk: return i
    for i, sl in enumerate(slots):
        if sl["last"]:
            nf = next_first(sl["acc"], i)
            if sl["ph"] == "A":
                lim = nf - (LA + 2 if nf < NS and slots[nf]["ph"] == "A" else 1)
                jobs.append([i + 2, min(lim, act_need(sl["chunk"]) - 1), mish(sl["acc"], sl["chunk"])])
            else:
                jobs.append([i + 2, min(nf - 1, i + 24), epi(sl["acc"], sl["q"], sl["ch"])])
    lds = []
    lds_waited = -1
    frag_idx = {}
    bias_idx = {}
    vm_waited = 0
    def wait_vm(upto):
        nonlocal vm_waited
        if upto + 1 > vm_waited:
            n = len(vm) - 1 - upto
            assert n <= 63
            A(f"s_waitcnt vmcnt({n})"); vm_waited = upto + 1
    def wait_lds(upto):
        nonlocal lds_waited
        if upto > lds_waited:
            n = min(14, len(lds) - 1 - upto)
            A(f"s_waitcnt lgkmcnt({n})"); lds_waited = len(lds) - 1 - n
    epoch_done = -1
    def reads(i):
        nonlocal epoch_done
        sl = slots[i]; st = sl["st"]; e = st // P
        if e > epoch_done:
            last = min(NST - 1, e * P + P - 1)
            wait_vm(vm.index(("dma", last)))
            A("s_barrier"); epoch_done = e
        if sl["first"] and sl["ph"] == "A":
            for q4 in range(4):
                A(f"ds_read_b128 {v(tile(sl['acc'])+4*q4,4)}, v{VBI} offset:{128*sl['chunk']+32*q4}"); lds.append("b")
        o = (st % R) * 4096 + sl["off"]
        fr = FR + 4 * (i % NF)
        for e2 in range(2):
            oo = o + e2 * sl["de"]
            A(f"ds_read_b64_tr_b16 {a(fr+2*e2,2)}, v{AD+3*sl['pat']+(oo>>16)} offset:{oo & 0xffff}"); lds.append("f")
        frag_idx[i] = len(lds) - 1
    next_dma = 18
    for i in range(LA): reads(i)
    for i, sl in enumerate(slots):
        if i % cfg.WP == 0 or frag_idx[i] > lds_waited:
            wait_lds(frag_idx[min(NS - 1, i + cfg.WP - 1 - (i % cfg.WP))])
        if "xs" in sl and sl["st"] < 18: wait_vm(vm.index(("xs", sl["xs"] | 1)))
        acc = v(tile(sl["acc"]), 16)
        cin = "0" if (sl["first"] and sl["ph"] == "B") else acc
        A(f"{M32} {acc}, {a(FR+4*(i%NF),4)}, {sl['b']}, {cin}")
        if i + LA < NS: reads(i + LA)
        if next_dma < NST and (i % 4 == 1 or (i % 4 == 3 and next_dma < sl["st"] + R - 2*P)):
            prev = next_dma - R
            if (prev < 0 or prev // P <= epoch_done - 2) and len(vm) - vm_waited < 60:
                for x in dma(next_dma): emit(x)
                next_dma += 1
        act = [j for j in jobs if j[2] and j[0] <= i]
        if act:
            cum = 0; rate = 0
            for j in [j for j in jobs if j[2]]:
                if j[0] > i + 40: break
                cum += len(j[2]); rate = max(rate, cum / max(1, j[1] - i + 1))
            n = int(rate + 0.999)
            while n > 0 and act:
                emit(act[0][2].pop(0)); n -= 1
                if not act[0][2]: act.pop(0)
        for j in jobs: assert not (j[2] and j[1] <= i and j[1] < NS), ("deadline", i, j[0], j[1], len(j[2]))
    for j in jobs:
        for x in j[2]: emit(x)
    assert next_dma == NST
    G.stamp_end(A, 2, 26, "k1")
    A.label("L2_end"); A("s_endpgm")
    return (name, (256, 256, BIAS + 1152), 256 + FR + 4*NF, 256)
```

```python
from asmlib import *
import gen as G
from gen import M32, f32, gen_frag, emit_pi, CH

def k2(A):
    name = "fin_kernel"
    kernel_head(A, name)
    A("s_cmp_ge_u32 s2, 192"); A("s_cbranch_scc1 L3_end")
    G.stamp_begin(A)
    A("s_load_dwordx2 s[4:5], s[0:1], 0"); A("s_load_dwordx2 s[6:7], s[0:1], 56"); A("s_load_dwordx2 s[26:27], s[0:1], 72")
    A("v_lshrrev_b32 v4, 6, v0"); A("v_readfirstlane_b32 s28, v4")
    A("s_and_b32 s29, s2, 63"); A("s_lshr_b32 s30, s2, 6")
    A("s_lshr_b32 s31, s28, 1"); A("s_and_b32 s32, s28, 1")
    A("s_mul_i32 s33, s30, 3"); A("s_add_u32 s33, s33, s31")
    A("s_mul_i32 s34, s32, 9"); A("s_add_u32 s34, s34, s33")
    A("s_mul_i32 s35, s29, 36864")
    A("s_lshl_b32 s36, s34, 11"); A("s_add_u32 s36, s36, s35"); A(f"s_add_u32 s36, s36, {G.P_OFF}")
    A("v_and_b32 v1, 63, v0"); A("v_and_b32 v5, 31, v0"); A("v_bfe_u32 v6, v0, 5, 1"); A("v_lshlrev_b32 v2, 4, v1")
    A("v_lshrrev_b32 v3, 3, v1"); A("v_bfe_u32 v7, v1, 4, 1"); A("v_lshlrev_b32 v7, 2, v7"); A("v_and_b32 v8, 7, v1"); A("v_xor_b32 v7, v7, v8")
    A("v_mul_u32_u24 v3, 1152, v3"); A("v_lshl_add_u32 v3, v7, 4, v3")
    A("v_mul_u32_u24 v9, 73728, v5"); A("v_lshl_add_u32 v9, v6, 5, v9")
    A("s_mul_i32 s37, s29, 1152"); A("s_lshl_b32 s38, s34, 6"); A("s_add_u32 s37, s37, s38")
    A("s_waitcnt lgkmcnt(0)")
    srd(A, 8, 4, G.XB); srd(A, 12, 6, G.XB); srd(A, 16, 26, G.WS_SIZE)
    ULDS, VLDS, ELDS = 0, 36864, 0
    A("s_lshl_b32 s39, s28, 12")
    A("s_lshl_b32 s40, s28, 7"); A("s_add_u32 s40, s40, s35"); A(f"s_add_u32 s40, s40, {G.U_OFF}")
    for i in range(4):
        A(f"s_add_u32 m0, s39, {1024*i}"); A(f"s_add_u32 s41, s40, {8*1152*i}")
        A("buffer_load_dwordx4 v3, s[16:19], s41 offen lds")
    A("s_cmp_ge_u32 s28, 3"); A("s_cbranch_scc1 L3_a")
    for i in range(4):
        A(f"s_add_u32 m0, s39, {6*4096+1024*i}"); A(f"s_add_u32 s41, s40, {6*128+8*1152*i}")
        A("buffer_load_dwordx4 v3, s[16:19], s41 offen lds")
    A.label("L3_a")
    UNR = 16
    A("v_lshlrev_b32 v7, 4, v6"); A("s_lshl_b32 s41, s29, 7"); A(f"s_add_u32 s41, s41, {G.UN_OFF}")
    for i in range(4): A(f"buffer_load_dwordx4 {v(UNR+4*i,4)}, v7, s[16:19], s41 offen offset:{32*i}")
    XV = 32
    A(f"buffer_load_dwordx4 {v(XV,4)}, v9, s[8:11], s37 offen"); A(f"buffer_load_dwordx4 {v(XV+4,4)}, v9, s[8:11], s37 offen offset:16")
    def pload(fs):
        A(f"s_add_u32 s41, s36, {fs*0x240000}")
        for q in range(2): A(f"buffer_load_dwordx4 {a(8*(fs%8)+4*q,4)}, v2, s[16:19], s41 offen offset:{1024*q}")
    for fs in range(8): pload(fs)
    MR, MI, MN, T = 40, 48, 56, 64
    A("v_lshlrev_b32 v10, 6, v5"); A("v_add_u32 v10, s29, v10"); A("v_cvt_f32_u32 v10, v10"); A(f"v_mul_f32 v10, {f32(1.0/2048)}, v10")
    A("v_cvt_f32_u32 v11, v6"); A("v_mul_f32 v11, 0x41800000, v11"); A("v_mul_f32 v11, v11, v10")
    for ks in range(2): gen_frag(A, MR+4*ks, MI+4*ks, [4*ks + c for c in CH], 10, 11, T, False)
    for i in range(8): A(f"v_xor_b32 v{MN+i}, 0x80008000, v{MI+i}")
    A("v_bfe_u32 v12, v1, 2, 2"); A("v_lshl_add_u32 v12, v6, 4, v12"); A("v_bfe_u32 v13, v1, 3, 1"); A("v_lshlrev_b32 v13, 6, v13")
    A("v_lshl_add_u32 v12, v12, 7, v13"); A("v_bfe_u32 v13, v1, 4, 1"); A("v_lshl_add_u32 v12, v13, 5, v12")
    A("v_and_b32 v13, 3, v1"); A("v_lshl_add_u32 v12, v13, 3, v12"); A("v_add_u32 v12, s39, v12"); A("v_xor_b32 v13, 64, v12")
    A("s_lshl_b32 s42, s28, 11"); A(f"s_add_u32 s42, s42, {VLDS}"); A("v_add_u32 v14, s42, v2")
    UR, UI, VR, VI = 64, 72, 80, 96
    def vtile(off, voff, special):
        for ks in range(2):
            for e in range(2):
                A(f"ds_read_b64_tr_b16 {v(UR+4*ks+2*e,2)}, v12 offset:{off+512*ks+1024*e}")
                A(f"ds_read_b64_tr_b16 {v(UI+4*ks+2*e,2)}, v13 offset:{off+512*ks+1024*e}")
        A("s_waitcnt lgkmcnt(0)")
        vr, vi = v(VR, 16), v(VI, 16)
        for ks in range(2):
            A(f"{M32} {vr}, {v(UR+4*ks,4)}, {v(MR+4*ks,4)}, {'0' if ks == 0 else vr}")
            A(f"{M32} {vr}, {v(UI+4*ks,4)}, {v(MN+4*ks,4)}, {vr}")
        if special:
            A("s_cmp_lg_u32 s28, 0"); A("s_cbranch_scc1 L3_nos")
            A("s_mov_b32 exec_lo, 1"); A("s_mov_b32 exec_hi, 1")
            for i in range(8):
                A(f"v_xor_b32 v{UR+i}, 0x80008000, v{UNR+8+i}"); A(f"v_mov_b32 v{UI+i}, v{UNR+i}")
            A("s_mov_b64 exec, -1"); A("s_nop 1")
            A.label("L3_nos")
        for ks in range(2):
            A(f"{M32} {vi}, {v(UR+4*ks,4)}, {v(MI+4*ks,4)}, {'0' if ks == 0 else vi}")
            A(f"{M32} {vi}, {v(UI+4*ks,4)}, {v(MR+4*ks,4)}, {vi}")
        for part, b in enumerate((VR, VI)):
            for i in range(8): A(f"v_cvt_pk_bf16_f32 v{112+8*part+i}, v{b+2*i}, v{b+2*i+1}")
            for par in range(2):
                A(f"ds_write_b128 v14, {v(112+8*part+4*par,4)} offset:{voff+18432*par+1024*part}")
    A("s_waitcnt vmcnt(18)")
    vtile(0, 0, True)
    A("s_cmp_ge_u32 s28, 3"); A("s_cbranch_scc1 L3_b")
    vtile(6*4096, 6*2048, False)
    A.label("L3_b")
    GF = 112
    A("s_waitcnt lgkmcnt(0)")
    emit_pi(A, 10, 5, 11); A("s_lshl_b32 s42, s33, 5"); A("v_add_u32 v10, s42, v10")
    A("v_and_b32 v15, 1, v10")
    A("v_cvt_f32_u32 v10, v10"); A(f"v_mul_f32 v10, {f32(1.0/576)}, v10")
    A("v_lshlrev_b32 v11, 3, v6"); A("v_add_u32 v11, s32, v11"); A("v_cvt_f32_u32 v11, v11"); A("v_mul_f32 v11, v11, v10")
    for kt in range(9): gen_frag(A, GF+8*kt, GF+8*kt+4, [32*kt + 2*c for c in CH], 10, 11, T, True)
    A("s_cmp_lg_u32 s32, 0"); A("s_cbranch_scc1 L3_c")
    A("s_mov_b32 exec_hi, 0")
    A(f"v_and_b32 v{GF}, 0xffff0000, v{GF}"); A(f"v_or_b32 v{GF}, 0x3f00, v{GF}")
    A(f"v_and_b32 v{GF+4}, 0xffff0000, v{GF+4}"); A(f"v_or_b32 v{GF+4}, 0x3f00, v{GF+4}"); A("v_lshlrev_b32 v15, 15, v15"); A(f"v_or_b32 v{GF+4}, v15, v{GF+4}")
    A("s_mov_b32 exec_hi, -1")
    A.label("L3_c")
    SEL = 16
    emit_pi(A, 10, 5, 11); A("v_lshlrev_b32 v11, 4, v6"); A("v_sub_u32 v10, v10, v11")
    A("v_mov_b32 v11, 0x3f80"); A("v_mov_b32 v15, 0x3f800000")
    for i in range(8):
        A(f"v_cmp_eq_u32 vcc, {2*i}, v10"); A(f"v_cndmask_b32 v{SEL+i}, 0, v11, vcc")
        A(f"v_cmp_eq_u32 vcc, {2*i+1}, v10"); A(f"v_cndmask_b32 v{SEL+i}, v{SEL+i}, v15, vcc")
    BS, YA = 80, 96
    bs = v(BS, 16)
    def psum(fs, n):
        A(f"s_waitcnt vmcnt({n})")
        for q in range(2): A(f"{M32} {bs}, {v(SEL+4*q,4)}, {a(8*(fs%8)+4*q,4)}, {'0' if fs == 0 and q == 0 else bs}")
    for fs in range(8):
        psum(fs, 14)
        pload(fs + 8)
    A("s_barrier")
    A("s_mul_i32 s42, s32, 18432"); A(f"s_add_u32 s42, s42, {VLDS}"); A("v_add_u32 v14, s42, v2")
    VF = 24
    ya = v(YA, 16)
    for n in range(5): A(f"ds_read_b128 {v(40+4*n,4)}, v14 offset:{1024*n}")
    for n in range(18):
        if n + 5 < 18: A(f"ds_read_b128 {v(40+4*((n+5)%6),4)}, v14 offset:{1024*(n+5)}")
        A(f"s_waitcnt lgkmcnt({min(5, 17-n)})")
        A(f"{M32} {ya}, {v(GF+4*n,4)}, {v(40+4*(n%6),4)}, {'0' if n == 0 else ya}")
    A("s_lshl_b32 s42, s28, 12"); A("v_add_u32 v14, s42, v2"); A("v_xor_b32 v15, 4096, v14")
    for i in range(4): A(f"ds_write_b128 v14, {v(YA+4*i,4)} offset:{ELDS+1024*i}")
    A("s_waitcnt lgkmcnt(0)"); A("s_barrier")
    for i in range(4): A(f"ds_read_b128 {v(40+4*i,4)}, v15 offset:{ELDS+1024*i}")
    for fs in range(8, 16): psum(fs, 2*(15-fs))
    A("s_lshl_b32 s42, s32, 31"); A(f"s_xor_b32 s42, s42, {f32(2.0/(576*2048))}")
    A("s_waitcnt lgkmcnt(0)")
    for i in range(16):
        A(f"v_mul_f32 v{40+i}, {f32(2.0/(576*2048))}, v{40+i}"); A(f"v_fmac_f32 v{40+i}, s42, v{YA+i}")
    for i in range(8):
        A(f"v_cvt_pk_bf16_f32 v{56+i}, v{40+2*i}, v{41+2*i}")
    for i in range(8):
        A(f"v_lshlrev_b32 v{40+2*i}, 16, v{56+i}"); A(f"v_and_b32 v{41+2*i}, 0xffff0000, v{56+i}")
        A(f"v_lshlrev_b32 v{YA+2*i}, 16, v{XV+i}"); A(f"v_and_b32 v{YA+2*i+1}, 0xffff0000, v{XV+i}")
        A(f"v_pk_add_f32 {v(40+2*i,2)}, {v(40+2*i,2)}, {v(YA+2*i,2)}")
        A(f"v_cvt_pk_bf16_f32 v{56+i}, v{40+2*i}, v{41+2*i}")
        A(f"v_cvt_pk_bf16_f32 v{64+i}, v{BS+2*i}, v{BS+2*i+1}")
    for i in range(8):
        A(f"v_lshlrev_b32 v{40+2*i}, 16, v{56+i}"); A(f"v_and_b32 v{41+2*i}, 0xffff0000, v{56+i}")
        A(f"v_lshlrev_b32 v{YA+2*i}, 16, v{64+i}"); A(f"v_and_b32 v{YA+2*i+1}, 0xffff0000, v{64+i}")
        A(f"v_pk_add_f32 {v(40+2*i,2)}, {v(40+2*i,2)}, {v(YA+2*i,2)}")
        A(f"v_cvt_pk_bf16_f32 v{72+i}, v{40+2*i}, v{41+2*i}")
    A("buffer_store_dwordx4 v[72:75], v9, s[12:15], s37 offen"); A("buffer_store_dwordx4 v[76:79], v9, s[12:15], s37 offen offset:16")
    G.stamp_end(A, 3, 26, "k2")
    A.label("L3_end"); A("s_endpgm")
    return (name, (192, 384, 36864 * 2), 184 + 64, 184)
```

```python
import sys
import gen, gen_k1, gen_k2
def mk(path, stamps):
    gen.STAMPS = stamps
    gen.build([gen.k0, gen.kmid, gen_k1.k1, gen_k2.k2], path)
mk("t02.s", True)
mk("cdna_kernels/" + gen.NAME + ".s", False)
```

```python
import sys, math
from asmlib import *
NAME = "parallel_sum__spectral_gfnet__dense_activation_mish__prompt"
XS_OFF, TP_OFF, TN_OFF, UN_OFF, U_OFF, P_OFF = 0, 0x240000, 0x480000, 0x482000, 0x490000, 0x700000
WT_OFF = P_OFF + 16 * 0x240000
ACT_OFF = P_OFF + 8 * 0x240000
FLG_OFF = WT_OFF + 0x250000
WS_SIZE = FLG_OFF + 256 * 1024
STAMP_OFF = 0x3000000
XB = 2048 * 576 * 2
WB = 2048 * 289 * 2
W1B = 576 * 4608 * 2
LOG2E = 1.4426950408889634
LN2 = 0.6931471805599453
BSCALE = LN2
M32 = "v_mfma_f32_32x32x16_bf16"
M16 = "v_mfma_f32_16x16x32_bf16"
STAMPS = False
MT = "s_memtime"

def stamp_begin(A):
    if STAMPS:
        for i in range(64, 96): A(f"s_mov_b32 s{i}, 0")
        A("s_memrealtime s[64:65]"); A(f"{MT} s[68:69]")
def mark(A, i):
    if STAMPS: A(f"{MT} s[{70+2*i}:{71+2*i}]")
def stamp_end(A, kidx, wsreg, tag):
    if STAMPS:
        A("s_waitcnt lgkmcnt(0)" if tag == "nowait" else "s_waitcnt vmcnt(0) lgkmcnt(0)")
        A("s_memrealtime s[66:67]"); A(f"{MT} s[70:71]"); A("s_waitcnt lgkmcnt(0)")
        A("s_mov_b64 exec, -1")
        A("v_lshrrev_b32 v3, 6, v0"); A("v_lshlrev_b32 v3, 7, v3")
        A(f"s_lshl_b32 s63, s2, 11"); A(f"s_add_u32 s63, s63, {STAMP_OFF + kidx*1048576}"); A("v_add_u32 v3, s63, v3")
        A("s_mov_b64 exec, 1")
        for q in range(8):
            for i in range(4): A(f"v_mov_b32 v{4+4*(q&1)+i}, s{64+4*q+i}")
            A(f"global_store_dwordx4 v3, v[{4+4*(q&1)}:{7+4*(q&1)}], s[{wsreg}:{wsreg+1}] offset:{16*q}")

def emit_pi(A, d, src, t):
    A(f"v_and_b32 v{d}, 3, v{src}")
    A(f"v_bfe_u32 v{t}, v{src}, 3, 2"); A(f"v_lshl_add_u32 v{d}, v{t}, 2, v{d}")
    A(f"v_bfe_u32 v{t}, v{src}, 2, 1"); A(f"v_lshl_add_u32 v{d}, v{t}, 4, v{d}")
def emit_kap2(A, d, src, t):
    A(f"v_and_b32 v{t}, 15, v{src}"); A(f"v_lshrrev_b32 v{d}, 4, v{src}"); A(f"v_lshl_add_u32 v{d}, v{t}, 1, v{d}")

def gen_frag(A, dst_c, dst_s, consts, vfreq, vbase, t, negsin):
    for j, c in enumerate(consts):
        if c == 0: A(f"v_mov_b32 v{t+j}, v{vbase}")
        else: A(f"v_fmamk_f32 v{t+j}, v{vfreq}, {f32(c)}, v{vbase}")
    for j in range(8):
        A(f"v_cos_f32 v{t+8+j}, v{t+j}")
        if negsin: A(f"v_sin_f32_e64 v{t+16+j}, -v{t+j}")
        else: A(f"v_sin_f32 v{t+16+j}, v{t+j}")
    for j in range(4):
        A(f"v_cvt_pk_bf16_f32 v{dst_c+j}, v{t+8+2*j}, v{t+9+2*j}")
        A(f"v_cvt_pk_bf16_f32 v{dst_s+j}, v{t+16+2*j}, v{t+17+2*j}")
CH = [0, 1, 2, 3, 8, 9, 10, 11]

def k0(A):
    name = "pre_kernel"
    kernel_head(A, name)
    A("s_cmp_ge_u32 s2, 192"); A("s_cbranch_scc1 L0_end")
    stamp_begin(A)
    A("s_load_dwordx2 s[4:5], s[0:1], 0"); A("s_load_dwordx2 s[6:7], s[0:1], 72")
    A("s_and_b32 s16, s2, 63")
    A("s_lshr_b32 s17, s2, 6")
    A("v_lshrrev_b32 v1, 3, v0")
    A("v_and_b32 v2, 7, v0")
    A("v_mul_u32_u24 v3, 73728, v1"); A("v_lshl_add_u32 v3, v2, 4, v3")
    A("s_mul_i32 s18, s16, 1152")
    A("v_lshrrev_b32 v4, 6, v0"); A("v_readfirstlane_b32 s19, v4")
    A("s_waitcnt lgkmcnt(0)")
    srd(A, 8, 4, XB); srd(A, 12, 6, WS_SIZE)
    X = 16
    for i in range(9):
        A(f"buffer_load_dwordx4 {v(X+4*i,4)}, v3, s[8:11], s18 offen offset:{128*i}")
    T = 124
    A("v_and_b32 v5, 31, v0")
    A("v_bfe_u32 v6, v0, 5, 1")
    A("s_cmp_eq_u32 s19, 3"); A("s_cbranch_scc1 L0_ln")
    emit_pi(A, 7, 5, 9); emit_pi(A, 8, 7, 9); emit_kap2(A, 7, 8, 9)
    A("s_mul_i32 s20, s17, 3"); A("s_add_u32 s20, s20, s19")
    A("s_lshl_b32 s21, s20, 5"); A("v_add_u32 v7, s21, v7")
    A("v_and_b32 v8, 1, v7"); A("v_lshlrev_b32 v8, 31, v8"); A("v_or_b32 v10, 1.0, v8")
    A("v_cvt_f32_u32 v7, v7"); A(f"v_mul_f32 v7, {f32(1.0/576)}, v7")
    A("v_cvt_f32_u32 v8, v6"); A("v_mul_f32 v8, 0x41000000, v8"); A("v_mul_f32 v8, v8, v7")
    for kk in range(18):
        gen_frag(A, T+24, T+28, [16*kk + j for j in range(8)], 7, 8, T, True)
        for j in range(4):
            A(f"v_accvgpr_write_b32 a{4*kk+j}, v{T+24+j}"); A(f"v_accvgpr_write_b32 a{72+4*kk+j}, v{T+28+j}")
    A("s_cmp_lg_u32 s20, 0"); A("s_cbranch_scc1 L0_nopatch")
    A("s_mov_b32 exec_lo, 1"); A("s_mov_b32 exec_hi, 1")
    A("v_mov_b32 v9, 0xbf803f80")
    for i in range(72): A(f"v_accvgpr_write_b32 a{72+i}, v9")
    A("s_mov_b64 exec, -1")
    A.label("L0_nopatch")
    MR, MI, MN = 156, 164, 172
    A("v_cvt_f32_u32 v7, v5"); A(f"v_mul_f32 v7, {f32(1.0/32)}, v7")
    A("v_lshlrev_b32 v8, 8, v6"); A("v_add_u32 v8, s16, v8"); A("v_cvt_f32_u32 v8, v8")
    A(f"v_mul_f32 v8, {f32(1.0/64)}, v8"); A("v_mul_f32 v8, v8, v7")
    for ks in range(2):
        gen_frag(A, MR+4*ks, MI+4*ks, [16*ks + c for c in CH], 7, 8, T, True)
    for i in range(8): A(f"v_xor_b32 v{MN+i}, 0x80008000, v{MI+i}")
    A.label("L0_ln")
    mark(A, 1)
    Fx = 52
    A("v_mov_b32 v12, 0"); A("v_mov_b32 v13, 0"); A("v_mov_b32 v14, 0"); A("v_mov_b32 v15, 0")
    for i in range(9):
        A(f"s_waitcnt vmcnt({8-i})")
        if i == 8: mark(A, 2)
        for q in range(4):
            w = X + 4*i + q; f = Fx + 2*(4*i+q)
            A(f"v_lshlrev_b32 v{f}, 16, v{w}"); A(f"v_and_b32 v{f+1}, 0xffff0000, v{w}")
        for q in range(4):
            f = Fx + 2*(4*i+q); acc = 12 + 2*(q & 1)
            A(f"v_pk_add_f32 {v(acc,2)}, {v(acc,2)}, {v(f,2)}")
    def red8(r):
        for m in ("quad_perm:[1,0,3,2]", "quad_perm:[2,3,0,1]", "row_half_mirror"):
            A(f"v_add_f32_dpp v{r}, v{r}, v{r} {m} row_mask:0xf bank_mask:0xf")
    A("v_pk_add_f32 v[12:13], v[12:13], v[14:15]"); A("v_add_f32 v12, v12, v13")
    red8(12)
    A(f"v_mul_f32 v12, {f32(1.0/576)}, v12")
    A("v_cvt_pk_bf16_f32 v14, v12, v12"); A("v_lshlrev_b32 v14, 16, v14"); A("v_mov_b32 v15, v14")
    A("v_sub_f32 v11, v12, v14")
    for r in range(T, T+4): A(f"v_mov_b32 v{r}, 0")
    for i in range(36):
        f = Fx + 2*i
        A(f"v_pk_add_f32 {v(f,2)}, {v(f,2)}, v[14:15] neg_lo:[0,1] neg_hi:[0,1]")
    for i in range(36):
        f = Fx + 2*i; acc = T + 2*(i & 1)
        A(f"v_pk_fma_f32 {v(acc,2)}, {v(f,2)}, {v(f,2)}, {v(acc,2)}")
        A(f"v_cvt_pk_bf16_f32 v{X+i}, v{f}, v{f+1}")
    A(f"v_pk_add_f32 v[12:13], {v(T,2)}, {v(T+2,2)}"); A("v_add_f32 v12, v12, v13")
    red8(12)
    A(f"v_mul_f32 v12, {f32(1.0/576)}, v12"); A("v_fma_f32 v12, -v11, v11, v12"); A("v_max_f32 v12, 0, v12")
    def rnd(r): A(f"v_cvt_pk_bf16_f32 v{r}, v{r}, v{r}"); A(f"v_lshlrev_b32 v{r}, 16, v{r}")
    rnd(12); A(f"v_add_f32 v12, {f32(1e-5)}, v12"); rnd(12); A("v_sqrt_f32 v12, v12"); rnd(12)
    A("v_rcp_f32 v12, v12"); A("v_mov_b32 v13, v12")
    A(f"v_mul_f32 v14, {f32(LOG2E)}, v12"); A("v_mov_b32 v15, v14")
    A("v_mul_u32_u24 v11, 528, v2"); A("v_lshl_add_u32 v11, v1, 4, v11")
    for i in range(9):
        for q in range(4):
            w = X + 4*i + q; f = Fx + 2*(4*i+q)
            A(f"v_lshlrev_b32 v{f}, 16, v{w}"); A(f"v_and_b32 v{f+1}, 0xffff0000, v{w}")
        for q in range(4):
            f = Fx + 2*(4*i+q)
            A(f"v_pk_mul_f32 {v(T+2*q,2)}, {v(f,2)}, v[12:13]")
        for q in range(4):
            A(f"v_cvt_pk_bf16_f32 v{X+4*i+q}, v{T+2*q}, v{T+2*q+1}")
        A(f"ds_write_b128 v11, {v(X+4*i,4)} offset:{8*528*i}")
    A("v_lshlrev_b32 v9, 9, v2"); A("v_lshl_add_u32 v9, v1, 4, v9")
    A("s_mul_i32 s22, s16, 36864"); A("s_mul_i32 s23, s17, 12288"); A("s_add_u32 s22, s22, s23")
    if XS_OFF: A(f"s_add_u32 s22, s22, {XS_OFF}")
    for t in range(3):
        if t < 2:
            A(f"s_cmp_lg_u32 s17, {t}"); A(f"s_cbranch_scc1 L0_xs{t+1}")
        for ii in range(3):
            i = 3*t + ii
            for q in range(4):
                f = Fx + 2*(4*i+q)
                A(f"v_pk_mul_f32 {v(f,2)}, {v(f,2)}, v[14:15]")
            for q in range(4):
                f = Fx + 2*(4*i+q)
                A(f"v_cvt_pk_bf16_f32 v{T+8+4*ii+q}, v{f}, v{f+1}")
            A(f"buffer_store_dwordx4 {v(T+8+4*ii,4)}, v9, s[12:15], s22 offen sc1")
            if ii < 2: A("s_add_u32 s22, s22, 4096")
        if t < 2:
            A("s_branch L0_xsd"); A.label(f"L0_xs{t+1}")
    A.label("L0_xsd")
    mark(A, 3)
    A("s_waitcnt lgkmcnt(0)"); A("s_barrier")
    mark(A, 4)
    A("s_cmp_eq_u32 s19, 3"); A("s_cbranch_scc1 L0_fin")
    A("v_mul_u32_u24 v11, 528, v6"); A("v_lshl_add_u32 v11, v5, 4, v11")
    R1, I1, R2, I2 = 180, 196, 212, 228
    AF = 16
    order = []
    for kk in range(18): order += [kk, kk + 18]
    for n in range(6): A(f"ds_read_b128 {v(AF+4*n,4)}, v11 offset:{1056*order[n]}")
    for n, kk in enumerate(order):
        if n + 6 < 36: A(f"ds_read_b128 {v(AF+4*((n+6)%8),4)}, v11 offset:{1056*order[n+6]}")
        A(f"s_waitcnt lgkmcnt({min(6, 35-n)})")
        accr, acci = (R1, I1) if kk < 18 else (R2, I2)
        kb = kk % 18
        A(f"{M32} {v(accr,16)}, {v(AF+4*(n%8),4)}, {a(4*kb,4)}, {'0' if kb == 0 else v(accr,16)}")
        A(f"{M32} {v(acci,16)}, {v(AF+4*(n%8),4)}, {a(72+4*kb,4)}, {'0' if kb == 0 else v(acci,16)}")
    ZR, ZI = 52, 60
    mark(A, 5)
    for i in range(16): A(f"v_fmac_f32 v{R1+i}, v10, v{R2+i}")
    for i in range(8): A(f"v_cvt_pk_bf16_f32 v{ZR+i}, v{R1+2*i}, v{R1+2*i+1}")
    for i in range(16): A(f"v_fmac_f32 v{I1+i}, v10, v{I2+i}")
    for i in range(8): A(f"v_cvt_pk_bf16_f32 v{ZI+i}, v{I1+2*i}, v{I1+2*i+1}")
    AR, AI, TR, TI = 68, 84, 100, 116
    A(f"{M32} {v(AR,16)}, {v(ZR,4)}, {v(MR,4)}, 0"); A(f"{M32} {v(AI,16)}, {v(ZR,4)}, {v(MI,4)}, 0")
    A(f"{M32} {v(AR,16)}, {v(ZR+4,4)}, {v(MR+4,4)}, {v(AR,16)}"); A(f"{M32} {v(AI,16)}, {v(ZR+4,4)}, {v(MI+4,4)}, {v(AI,16)}")
    A(f"{M32} {v(TR,16)}, {v(ZI,4)}, {v(MN,4)}, {v(AR,16)}"); A(f"{M32} {v(TI,16)}, {v(ZI,4)}, {v(MR,4)}, {v(AI,16)}")
    A(f"{M32} {v(TR,16)}, {v(ZI+4,4)}, {v(MN+4,4)}, {v(TR,16)}"); A(f"{M32} {v(TI,16)}, {v(ZI+4,4)}, {v(MR+4,4)}, {v(TI,16)}")
    A("v_mul_u32_u24 v9, 73728, v5"); A("v_lshl_add_u32 v9, v6, 5, v9")
    A("s_lshl_b32 s22, s20, 7"); A("s_add_u32 s22, s22, s18"); A(f"s_add_u32 s22, s22, {TP_OFF}")
    A("s_nop 7")
    A("s_cmp_lg_u32 s20, 0"); A("s_cbranch_scc1 L0_nonyq")
    A("s_mov_b32 exec_hi, 0")
    A(f"v_sub_f32 v7, v{TI}, v{AI}"); A(f"v_sub_f32 v8, v{AR}, v{TR}")
    A(f"v_mov_b32 v{TR}, v{AR}"); A(f"v_mov_b32 v{TI}, v{AI}")
    A("v_cvt_pk_bf16_f32 v7, v7, v8"); A("v_lshlrev_b32 v8, 1, v5")
    A("s_lshl_b32 s23, s16, 7"); A(f"s_add_u32 s23, s23, {TN_OFF}")
    A("buffer_store_short v7, v8, s[12:15], s23 offen sc1"); A("buffer_store_short_d16_hi v7, v8, s[12:15], s23 offen offset:64 sc1")
    A("s_mov_b32 exec_hi, -1")
    A.label("L0_nonyq")
    for i in range(8): A(f"v_cvt_pk_bf16_f32 v{16+i}, v{TR+2*i}, v{TR+2*i+1}")
    A(f"buffer_store_dwordx4 v[16:19], v9, s[12:15], s22 offen sc1"); A(f"buffer_store_dwordx4 v[20:23], v9, s[12:15], s22 offen offset:16 sc1")
    for i in range(8): A(f"v_cvt_pk_bf16_f32 v{24+i}, v{TI+2*i}, v{TI+2*i+1}")
    A(f"buffer_store_dwordx4 v[24:27], v9, s[12:15], s22 offen offset:64 sc1"); A(f"buffer_store_dwordx4 v[28:31], v9, s[12:15], s22 offen offset:80 sc1")
    mark(A, 6)
    A.label("L0_fin")
    stamp_end(A, 0, 6, "k0")
    A.label("L0_end"); A("s_endpgm")
    return (name, (192, 256, 72 * 528), 256 + 144, 256)

def kmid(A):
    name = "mid_kernel"
    kernel_head(A, name)
    A("s_cmp_ge_u32 s2, 73"); A("s_cbranch_scc1 L1_end")
    stamp_begin(A)
    A("s_load_dwordx4 s[4:7], s[0:1], 8"); A("s_load_dwordx2 s[24:25], s[0:1], 72")
    A("v_lshrrev_b32 v4, 6, v0"); A("v_readfirstlane_b32 s19, v4")
    A("s_lshl_b32 s26, s2, 2"); A("s_add_u32 s26, s26, s19")
    A("s_cmp_ge_u32 s26, 289"); A("s_cbranch_scc1 L1_fin")
    A(f"s_mul_i32 s27, s26, {(65536 + 8) // 9}"); A("s_lshr_b32 s27, s27, 16")
    A("s_mul_i32 s28, s27, 9"); A("s_sub_u32 s28, s26, s28")
    A("v_and_b32 v1, 63, v0"); A("v_and_b32 v5, 31, v0"); A("v_bfe_u32 v6, v0, 5, 1")
    A("s_mul_i32 s29, s27, 73728"); A("s_lshl_b32 s30, s28, 7"); A("s_add_u32 s29, s29, s30"); A(f"s_add_u32 s29, s29, {TP_OFF}")
    A("s_mov_b32 s31, 1152")
    A("s_mul_i32 s32, s27, 1152"); A("s_add_u32 s32, s32, s30"); A(f"s_add_u32 s32, s32, {U_OFF}")
    A("s_mov_b32 s33, 36864")
    emit_pi(A, 7, 5, 9); emit_kap2(A, 8, 7, 9)
    A("s_lshl_b32 s34, s28, 6"); A("s_mul_i32 s35, s27, 578"); A("s_add_u32 s34, s34, s35")
    A("v_lshlrev_b32 v8, 1, v8"); A("v_add_u32 v8, s34, v8")
    A("s_cmp_lg_u32 s26, 288"); A("s_cbranch_scc1 L1_norm")
    A(f"s_mov_b32 s29, {TN_OFF}"); A("s_mov_b32 s31, 128"); A(f"s_mov_b32 s32, {UN_OFF}"); A("s_mov_b32 s33, 128")
    A("v_mul_u32_u24 v8, 578, v5"); A("v_add_u32 v8, 576, v8")
    A.label("L1_norm")
    A(f"v_mul_u32_u24 v9, {128*578}, v6"); A("v_add_u32 v8, v8, v9")
    A("s_waitcnt lgkmcnt(0)")
    srd(A, 8, 4, WB); srd(A, 12, 6, WB); srd(A, 20, 24, WS_SIZE)
    A("v_lshrrev_b32 v2, 3, v1"); A("v_bfe_u32 v3, v1, 4, 1"); A("v_lshlrev_b32 v3, 2, v3"); A("v_and_b32 v7, 7, v1"); A("v_xor_b32 v3, v3, v7")
    A("v_mul_lo_u32 v2, v2, s31"); A("v_lshl_add_u32 v2, v3, 4, v2")
    A("s_lshl_b32 s36, s19, 13"); A("s_lshl_b32 s37, s31, 3")
    for i in range(8):
        A(f"s_add_u32 m0, s36, {1024*i}")
        A("buffer_load_dwordx4 v2, s[20:23], s29 offen lds")
        A("s_add_u32 s29, s29, s37")
    WR, WI = 16, 48
    for i in range(64): A(f"v_mov_b32 v{WR+i}, 0")
    for mt in range(2):
        for r in range(16):
            j2 = 32*mt + 8*(r >> 2) + (r & 3)
            A(f"s_mov_b32 s38, {18496*j2}")
            A(f"buffer_load_short_d16_hi v{WR+16*mt+r}, v8, s[8:11], s38 offen")
            A(f"buffer_load_short_d16_hi v{WI+16*mt+r}, v8, s[12:15], s38 offen")
            if mt == 1 and r >= 8 and False: pass
    mark(A, 1)
    C, S_, N_, T = 80, 112, 144, 176
    A("v_cvt_f32_u32 v10, v5"); A(f"v_mul_f32 v10, {f32(1.0/64)}, v10")
    A("v_cvt_f32_u32 v11, v6"); A("v_mul_f32 v11, 4.0, v11"); A("v_mul_f32 v11, v11, v10")
    for ks in range(2):
        gen_frag(A, C+4*ks, S_+4*ks, [16*ks + c for c in CH], 10, 11, T, False)
    A("v_and_b32 v12, 1, v5"); A("v_mul_u32_u24 v12, 0x8000, v12"); A("v_lshl_add_u32 v12, v12, 16, v12")
    for base in (C, S_):
        for i in range(8): A(f"v_xor_b32 v{base+8+i}, v12, v{base+i}")
        for i in range(16): A(f"v_xor_b32 v{base+16+i}, 0x80000000, v{base+i}")
    for i in range(32): A(f"v_xor_b32 v{N_+i}, 0x80008000, v{S_+i}")
    A("v_bfe_u32 v2, v1, 2, 2"); A("v_lshl_add_u32 v2, v6, 2, v2")
    A("v_bfe_u32 v3, v1, 3, 1"); A("v_lshlrev_b32 v3, 6, v3")
    A("v_lshl_add_u32 v2, v2, 7, v3")
    A("v_bfe_u32 v3, v1, 4, 1"); A("v_lshl_add_u32 v2, v3, 5, v2")
    A("v_and_b32 v3, 3, v1"); A("v_lshl_add_u32 v2, v3, 3, v2")
    A("v_add_u32 v2, s36, v2"); A("v_xor_b32 v3, 64, v2")
    TRr, TIi = 176, 192
    mark(A, 2)
    A("s_waitcnt vmcnt(60)")
    mark(A, 3)
    for ks in range(4):
        for e in range(2):
            A(f"ds_read_b64_tr_b16 {v(TRr+4*ks+2*e,2)}, v2 offset:{2048*ks+1024*e}")
            A(f"ds_read_b64_tr_b16 {v(TIi+4*ks+2*e,2)}, v3 offset:{2048*ks+1024*e}")
    A("s_waitcnt lgkmcnt(0)")
    def acc(i): return a(16*i, 16)
    for mt in range(2):
        xr, xi = acc(2*mt), acc(2*mt+1)
        for ks in range(4):
            c = v(C+16*mt+4*ks, 4); sn = v(S_+16*mt+4*ks, 4); nn = v(N_+16*mt+4*ks, 4)
            A(f"{M32} {xr}, {c}, {v(TRr+4*ks,4)}, {'0' if ks == 0 else xr}")
            A(f"{M32} {xi}, {c}, {v(TIi+4*ks,4)}, {'0' if ks == 0 else xi}")
            A(f"{M32} {xr}, {sn}, {v(TIi+4*ks,4)}, {xr}")
            A(f"{M32} {xi}, {nn}, {v(TRr+4*ks,4)}, {xi}")
    mark(A, 4)
    A("s_waitcnt vmcnt(0)")
    mark(A, 5)
    YR, YI = 208, 224
    for mt in range(2):
        for r in range(0, 16, 2):
            for e in range(2):
                i = 16*mt + r + e
                A(f"v_accvgpr_read_b32 v{240+e}, a{32*mt+r+e}"); A(f"v_accvgpr_read_b32 v{242+e}, a{32*mt+16+r+e}")
                A(f"v_mul_f32 v{244+e}, v{240+e}, v{WR+i}"); A(f"v_mul_f32 v{246+e}, v{240+e}, v{WI+i}")
                A(f"v_fma_f32 v{244+e}, -v{242+e}, v{WI+i}, v{244+e}"); A(f"v_fmac_f32 v{246+e}, v{242+e}, v{WR+i}")
            A(f"v_cvt_pk_bf16_f32 v{YR+8*mt+r//2}, v244, v245"); A(f"v_cvt_pk_bf16_f32 v{YI+8*mt+r//2}, v246, v247")
    UA = 16
    mark(A, 6)
    for nt in range(2):
        ur, ui = v(UA+32*nt, 16), v(UA+32*nt+16, 16)
        for ks in range(4):
            c = v(C+16*nt+4*ks, 4); sn = v(S_+16*nt+4*ks, 4); nn = v(N_+16*nt+4*ks, 4)
            A(f"{M32} {ur}, {v(YR+4*ks,4)}, {c}, {'0' if ks == 0 else ur}")
            A(f"{M32} {ui}, {v(YI+4*ks,4)}, {c}, {'0' if ks == 0 else ui}")
            A(f"{M32} {ur}, {v(YI+4*ks,4)}, {nn}, {ur}")
            A(f"{M32} {ui}, {v(YR+4*ks,4)}, {sn}, {ui}")
    A("v_mul_lo_u32 v9, v5, s33"); A("v_lshl_add_u32 v9, v6, 5, v9")
    A("s_lshl_b32 s37, s33, 5")
    for nt in range(2):
        for part in range(2):
            b = UA + 32*nt + 16*part; o = 176 + 16*nt + 8*part
            for i in range(8): A(f"v_cvt_pk_bf16_f32 v{o+i}, v{b+2*i}, v{b+2*i+1}")
            A(f"buffer_store_dwordx4 {v(o,4)}, v9, s[20:23], s32 offen offset:{64*part} sc1")
            A(f"buffer_store_dwordx4 {v(o+4,4)}, v9, s[20:23], s32 offen offset:{64*part+16} sc1")
        if nt == 0: A("s_add_u32 s32, s32, s37")
    mark(A, 7)
    A.label("L1_fin")
    A("s_waitcnt lgkmcnt(0)")
    stamp_end(A, 1, 24, "mid")
    A.label("L1_end"); A("s_endpgm")
    return (name, (73, 256, 32768), 256 + 64, 256)

def build(kernels, path):
    A = Asm()
    body = Asm()
    infos = [k(body) for k in kernels]
    hdr = open("cdna_kernels/" + NAME + ".s.ref").read().split("; Override launch")[0]
    out = hdr
    for name, (g, b, lds), vg, acc in infos:
        out += f"; @launch kernel={name} grid=({g},1,1) block=({b},1,1) lds={lds}\n"
    out += '.amdgcn_target "amdgcn-amd-amdhsa--gfx950"\n'
    body.raw("L_text_end:")
    for name, _, vg, acc in infos: kernel_desc(body, name, vg, acc)
    open(path, "w").write(out + body.text())
    print(path, "pads", body.pads, "lines", len(body.lines))

if __name__ == "__main__":
    build([k0, kmid], "t01.s")
```

```python
from asmlib import *
import gen as G
from gen import M32, f32, emit_pi, emit_kap2, CH, mark

class Cfg0:
    pf_w2 = False
    pf_code = True
    pf_w1 = True
    pregen = 0
    hlate = False
    endpf = False
    tag = 'k0'
    w1cols = 4
    hx = True
    latepf = True
    nojob = False

def frag_ops(dst_c, dst_s, consts, vfreq, vbase, t, negsin):
    L = []
    for j, c in enumerate(consts):
        L.append(f"v_mov_b32 v{t+j}, v{vbase}" if c == 0 else f"v_fmamk_f32 v{t+j}, v{vfreq}, {f32(c)}, v{vbase}")
    for j in range(8):
        L.append(f"v_cos_f32 v{t+8+j}, v{t+j}")
        L.append(f"v_sin_f32_e64 v{t+16+j}, -v{t+j}" if negsin else f"v_sin_f32 v{t+16+j}, v{t+j}")
    for j in range(4):
        L.append(f"v_cvt_pk_bf16_f32 v{dst_c+j}, v{t+8+2*j}, v{t+9+2*j}")
        L.append(f"v_cvt_pk_bf16_f32 v{dst_s+j}, v{t+16+2*j}, v{t+17+2*j}")
    return L

def k0(A, cfg=Cfg0):
    name = "pre_kernel"
    kernel_head(A, name)
    A("s_cmp_ge_u32 s2, 256"); A("s_cbranch_scc1 L0_end")
    G.stamp_begin(A)
    A("s_load_dwordx4 s[4:7], s[0:1], 0")
    A("s_load_dwordx2 s[24:25], s[0:1], 16")
    A("s_load_dwordx2 s[26:27], s[0:1], 72")
    A("s_load_dwordx2 s[28:29], s[0:1], 32")
    A("s_load_dwordx2 s[30:31], s[0:1], 48")
    npf = 0
    if cfg.pf_code:
        A("s_getpc_b64 s[50:51]"); A.label("L0_pc")
        A("s_lshr_b32 s40, s2, 3"); A("s_lshl_b32 s40, s40, 7")
        A("v_lshlrev_b32 v1, 12, v0"); A("v_add_u32 v1, s40, v1"); A("v_min_u32 v1, L_text_end-L0_pc-4, v1")
        A("v_cmp_gt_u32 vcc, 16, v0"); A("s_and_saveexec_b64 s[52:53], vcc"); A("s_cbranch_execz L0_nc")
        A("global_load_dword v252, v1, s[50:51]")
        A.label("L0_nc")
        A("s_mov_b64 exec, s[52:53]")
    A("v_lshrrev_b32 v4, 6, v0"); A("v_readfirstlane_b32 s19, v4")
    A("v_and_b32 v5, 31, v0"); A("v_bfe_u32 v6, v0, 5, 1")
    A("s_lshr_b32 s40, s2, 3"); A("s_mul_i32 s43, s40, 162"); A("v_min_u32 v12, 161, v0"); A("v_add_u32 v248, s43, v12"); A("v_lshlrev_b32 v248, 7, v248")
    A(f"v_min_u32 v12, {18*cfg.w1cols-1}, v0")
    A(f"v_mul_u32_u24 v13, {(1 << 16) // 18 + 1}, v12"); A("v_lshrrev_b32 v13, 16, v13")
    A("v_mul_u32_u24 v14, 18, v13"); A("v_sub_u32 v12, v12, v14"); A("s_mul_i32 s43, s40, 18"); A("v_add_u32 v12, s43, v12")
    A("v_and_b32 v14, 1, v13"); A("v_lshrrev_b32 v13, 1, v13"); A("v_sub_u32 v15, 8, v13"); A("v_cmp_eq_u32 vcc, 1, v14"); A("v_cndmask_b32 v13, v13, v15, vcc")
    A("v_mul_u32_u24 v249, 9216, v12"); A("v_lshl_add_u32 v249, v13, 7, v249")
    A("s_and_b32 s40, s2, 7"); A("s_mul_i32 s41, s40, 1152"); A(f"s_mul_i32 s42, s40, {576*1152}")
    A("s_cmp_ge_u32 s2, 192"); A("s_cbranch_scc1 L0_helper")
    A("s_and_b32 s16, s2, 63"); A("s_lshr_b32 s17, s2, 6")
    A("v_lshrrev_b32 v1, 3, v0"); A("v_and_b32 v2, 7, v0")
    A("v_mul_u32_u24 v3, 73728, v1"); A("v_lshl_add_u32 v3, v2, 4, v3")
    A("s_mul_i32 s18, s16, 1152")
    X, Fx, T = 16, 52, 124
    FB = 148
    MR, MI, MN = 220, 228, 236
    emit_pi(A, 8, 5, 9); emit_kap2(A, 7, 8, 9)
    A("s_mul_i32 s20, s17, 3"); A("s_add_u32 s20, s20, s19")
    A("s_lshl_b32 s21, s20, 5"); A("v_add_u32 v7, s21, v7")
    A("v_cmp_eq_u32 s[44:45], 0, v7")
    A("v_and_b32 v8, 1, v7"); A("v_cmp_eq_u32 s[46:47], 1, v8")
    A("v_lshlrev_b32 v8, 31, v8"); A("v_or_b32 v10, 1.0, v8")
    A("v_bfe_u32 v8, v7, 1, 1"); A("v_mul_u32_u24 v8, 0x8000, v8"); A("v_lshl_add_u32 v244, v8, 16, v8")
    A("v_add_u32 v8, 1, v7"); A("v_bfe_u32 v8, v8, 1, 1"); A("v_mul_u32_u24 v8, 0x8000, v8"); A("v_lshl_add_u32 v245, v8, 16, v8")
    A("v_cvt_f32_u32 v7, v7"); A(f"v_mul_f32 v7, {f32(1.0/576)}, v7")
    A("v_cvt_f32_u32 v8, v6"); A("v_mul_f32 v8, 0x41000000, v8"); A("v_mul_f32 v8, v8, v7")
    GS = [Fx, Fx + 16]
    def pack(kk):
        g = GS[kk & 1]
        for j in range(8): A(f"v_cvt_pk_bf16_f32 v{FB+8*kk+j}, v{g+2*j}, v{g+2*j+1}")
    def gen(kk):
        g = GS[kk & 1]
        if kk < 2:
            for j in range(8):
                c = 16*kk + j
                A(f"v_mov_b32 v{T+j}, v8" if c == 0 else f"v_fmamk_f32 v{T+j}, v7, {f32(c)}, v8")
            for j in range(8):
                A(f"v_cos_f32 v{g+j}, v{T+j}"); A(f"v_sin_f32_e64 v{g+8+j}, -v{T+j}")
            for j in range(8): A(f"v_cndmask_b32 v{g+8+j}, v{g+8+j}, {'-1.0' if j & 1 else '1.0'}, s[44:45]")
        else:
            o = GS[(kk + 1) & 1]
            for j in range(0, 16, 2): A(f"v_pk_fma_f32 {v(g+j,2)}, {v(o+j,2)}, v[246:247], {v(g+j,2)} neg_lo:[0,0,1] neg_hi:[0,0,1]")
        pack(kk)
    A("v_mul_f32 v246, 0x41800000, v7"); A("v_cos_f32 v246, v246"); A("v_add_f32 v246, v246, v246"); A("v_mov_b32 v247, v246")
    for kk in range(cfg.pregen): gen(kk)
    A("s_waitcnt lgkmcnt(0)")
    mark(A, 7)
    srd(A, 8, 4, G.XB); srd(A, 12, 26, G.WS_SIZE)
    for i in range(9):
        A(f"buffer_load_dwordx4 {v(X+4*i,4)}, v3, s[8:11], s18 offen offset:{128*i}")
    def wpf():
        srd(A, 32, 28, G.W1B); srd(A, 36, 30, G.W1B)
        if cfg.pf_w1: A("buffer_load_dword v254, v249, s[32:35], s41 offen")
        if cfg.pf_w2: A("buffer_load_dword v255, v248, s[36:39], s42 offen")
    if not cfg.latepf:
        wpf(); npf = int(cfg.pf_w1) + int(cfg.pf_w2)
    A("s_cmp_eq_u32 s19, 3"); A("s_cbranch_scc1 L0_ln")
    for kk in range(cfg.pregen, 9): gen(kk)
    mset = ["v_cvt_f32_u32 v7, v5", f"v_mul_f32 v7, {f32(1.0/32)}, v7", "v_lshlrev_b32 v8, 8, v6", "v_add_u32 v8, s16, v8", "v_cvt_f32_u32 v8, v8",
            f"v_mul_f32 v8, {f32(1.0/64)}, v8", "v_mul_f32 v8, v8, v7"]
    for ks in range(2): mset += frag_ops(MR+4*ks, MI+4*ks, [16*ks + c for c in CH], 7, 8, T, True)
    mset += [f"v_xor_b32 v{MN+i}, 0x80008000, v{MI+i}" for i in range(8)]
    for x in mset: A(x)
    A.label("L0_ln")
    mark(A, 1)
    A("v_mov_b32 v12, 0"); A("v_mov_b32 v13, 0"); A("v_mov_b32 v14, 0"); A("v_mov_b32 v15, 0")
    for i in range(9):
        A(f"s_waitcnt vmcnt({8-i+npf})")
        if i == 8:
            mark(A, 2)
            if cfg.latepf: wpf()
        for q in range(4):
            w = X + 4*i + q; f = Fx + 2*(4*i+q)
            A(f"v_lshlrev_b32 v{f}, 16, v{w}"); A(f"v_and_b32 v{f+1}, 0xffff0000, v{w}")
        for q in range(4):
            f = Fx + 2*(4*i+q); acc = 12 + 2*(q & 1)
            A(f"v_pk_add_f32 {v(acc,2)}, {v(acc,2)}, {v(f,2)}")
    def red8(r):
        for m in ("quad_perm:[1,0,3,2]", "quad_perm:[2,3,0,1]", "row_half_mirror"):
            A(f"v_add_f32_dpp v{r}, v{r}, v{r} {m} row_mask:0xf bank_mask:0xf")
    A("v_pk_add_f32 v[12:13], v[12:13], v[14:15]"); A("v_add_f32 v12, v12, v13")
    red8(12)
    A(f"v_mul_f32 v12, {f32(1.0/576)}, v12")
    A("v_cvt_pk_bf16_f32 v14, v12, v12"); A("v_lshlrev_b32 v14, 16, v14"); A("v_mov_b32 v15, v14")
    A("v_sub_f32 v11, v12, v14")
    for r in range(T, T+4): A(f"v_mov_b32 v{r}, 0")
    for i in range(36):
        f = Fx + 2*i
        A(f"v_pk_add_f32 {v(f,2)}, {v(f,2)}, v[14:15] neg_lo:[0,1] neg_hi:[0,1]")
    for i in range(36):
        f = Fx + 2*i; acc = T + 2*(i & 1)
        A(f"v_pk_fma_f32 {v(acc,2)}, {v(f,2)}, {v(f,2)}, {v(acc,2)}")
    A(f"v_pk_add_f32 v[12:13], {v(T,2)}, {v(T+2,2)}"); A("v_add_f32 v12, v12, v13")
    red8(12)
    rnd = ["v_cvt_pk_bf16_f32 v12, v12, v12", "v_lshlrev_b32 v12, 16, v12"]
    chain = [f"v_mul_f32 v12, {f32(1.0/576)}, v12", "v_fma_f32 v12, -v11, v11, v12", "v_max_f32 v12, 0, v12"] + rnd + [f"v_add_f32 v12, {f32(1e-5)}, v12"] + rnd
    chain += ["v_sqrt_f32 v12, v12"] + rnd + ["v_rcp_f32 v12, v12", "v_mov_b32 v13, v12", f"v_mul_f32 v14, {f32(G.LOG2E)}, v12", "v_mov_b32 v15, v14"]
    for x in chain: A(x)
    A("v_mul_u32_u24 v11, 528, v2"); A("v_lshl_add_u32 v11, v1, 4, v11")
    for i in range(9):
        for q in range(4):
            f = Fx + 2*(4*i+q)
            A(f"v_pk_mul_f32 {v(T+2*q,2)}, {v(f,2)}, v[12:13]")
        for q in range(4):
            A(f"v_cvt_pk_bf16_f32 v{X+4*i+q}, v{T+2*q}, v{T+2*q+1}")
        A(f"ds_write_b128 v11, {v(X+4*i,4)} offset:{8*528*i}")
    A("v_lshlrev_b32 v9, 9, v2"); A("v_lshl_add_u32 v9, v1, 4, v9")
    A("s_mul_i32 s22, s16, 36864"); A("s_mul_i32 s23, s17, 12288"); A("s_add_u32 s22, s22, s23")
    if G.XS_OFF: A(f"s_add_u32 s22, s22, {G.XS_OFF}")
    for t in range(3):
        if t < 2:
            A(f"s_cmp_lg_u32 s17, {t}"); A(f"s_cbranch_scc1 L0_xs{t+1}")
        for ii in range(3):
            i = 3*t + ii
            for q in range(4):
                f = Fx + 2*(4*i+q)
                A(f"v_pk_mul_f32 {v(f,2)}, {v(f,2)}, v[14:15]")
            for q in range(4):
                f = Fx + 2*(4*i+q)
                A(f"v_cvt_pk_bf16_f32 v{T+8+4*ii+q}, v{f}, v{f+1}")
            A(f"buffer_store_dwordx4 {v(T+8+4*ii,4)}, v9, s[12:15], s22 offen sc1")
            if ii < 2: A("s_add_u32 s22, s22, 4096")
        if t < 2:
            A("s_branch L0_xsd"); A.label(f"L0_xs{t+1}")
    A.label("L0_xsd")
    mark(A, 3)
    A("s_waitcnt lgkmcnt(0)"); A("s_barrier")
    mark(A, 4)
    A("s_cmp_eq_u32 s19, 3"); A("s_cbranch_scc1 L0_fin")
    A("v_mul_u32_u24 v11, 528, v6"); A("v_lshl_add_u32 v11, v5, 4, v11")
    R1, I1, R2, I2 = 52, 68, 84, 100
    AF = 16; DV = 116
    DVS = [116, 140]
    TG = 124
    order = []
    for kk in range(9): order += [kk, kk + 18, kk + 9, kk + 27]
    def derive(kk):
        d = DV0 + 8 * (kk & 1); r = FB + 8*kk; L = []
        for j in range(4):
            L.append(f"v_cndmask_b32 v{d+j}, v{r+j}, v{r+4+j}, s[46:47]"); L.append(f"v_cndmask_b32 v{d+4+j}, v{r+4+j}, v{r+j}, s[46:47]")
        for j in range(4):
            L.append(f"v_xor_b32 v{d+j}, v244, v{d+j}"); L.append(f"v_xor_b32 v{d+4+j}, v245, v{d+4+j}")
        return L
    DV0 = 108 + 8
    for n in range(6): A(f"ds_read_b128 {v(AF+4*n,4)}, v11 offset:{1056*order[n]}")
    fill = derive(0)
    late = []
    for n, kk in enumerate(order):
        if n + 6 < 36: A(f"ds_read_b128 {v(AF+4*((n+6)%8),4)}, v11 offset:{1056*order[n+6]}")
        A(f"s_waitcnt lgkmcnt({min(6, 35-n)})")
        accr, acci = (R1, I1) if kk < 18 else (R2, I2)
        kb = n // 4
        fb = FB + 8*kb if n % 4 < 2 else DV0 + 8*(kb & 1)
        if n % 4 == 2:
            assert not fill
            if kb + 1 < 9: fill = derive(kb + 1)
        for part, acc in enumerate((accr, acci)):
            A(f"{M32} {v(acc,16)}, {v(AF+4*(n%8),4)}, {v(fb+4*part,4)}, {'0' if n < 2 else v(acc,16)}")
            k = 4 if n < 2 else 2
            for _ in range(k):
                if fill: A(fill.pop(0))
            if n >= 12:
                for _ in range(2):
                    if late: A(late.pop(0))
    assert not late and not fill
    mark(A, 5)
    ZR, ZI = 16, 24
    for i in range(16): A(f"v_fmac_f32 v{R1+i}, v10, v{R2+i}")
    for i in range(8): A(f"v_cvt_pk_bf16_f32 v{ZR+i}, v{R1+2*i}, v{R1+2*i+1}")
    AR, AI, TR, TI = 148, 164, 180, 196
    zi = [f"v_fmac_f32 v{I1+i}, v10, v{I2+i}" for i in range(16)] + [f"v_cvt_pk_bf16_f32 v{ZI+i}, v{I1+2*i}, v{I1+2*i+1}" for i in range(8)]
    for x in (f"{M32} {v(AR,16)}, {v(ZR,4)}, {v(MR,4)}, 0", f"{M32} {v(AI,16)}, {v(ZR,4)}, {v(MI,4)}, 0",
              f"{M32} {v(AR,16)}, {v(ZR+4,4)}, {v(MR+4,4)}, {v(AR,16)}", f"{M32} {v(AI,16)}, {v(ZR+4,4)}, {v(MI+4,4)}, {v(AI,16)}"):
        A(x)
        for _ in range(6): A(zi.pop(0))
    A(f"{M32} {v(TR,16)}, {v(ZI,4)}, {v(MN,4)}, {v(AR,16)}"); A(f"{M32} {v(TR,16)}, {v(ZI+4,4)}, {v(MN+4,4)}, {v(TR,16)}")
    A(f"{M32} {v(TI,16)}, {v(ZI,4)}, {v(MR,4)}, {v(AI,16)}"); A(f"{M32} {v(TI,16)}, {v(ZI+4,4)}, {v(MR+4,4)}, {v(TI,16)}")
    A("s_mul_i32 s23, s19, 4608"); A("s_add_u32 s23, s23, 38016")
    A("v_mul_u32_u24 v11, 144, v5"); A("v_lshl_add_u32 v11, v6, 5, v11"); A("v_add_u32 v11, s23, v11")
    A("v_bfe_u32 v1, v0, 3, 3"); A("v_mul_u32_u24 v3, 144, v1"); A("v_lshl_add_u32 v3, v2, 4, v3"); A("v_add_u32 v3, s23, v3")
    A("v_mul_u32_u24 v9, 73728, v1"); A("v_lshl_add_u32 v9, v2, 4, v9")
    A("s_lshl_b32 s22, s20, 7"); A("s_add_u32 s22, s22, s18"); A(f"s_add_u32 s22, s22, {G.TP_OFF}")
    A("s_cmp_lg_u32 s20, 0"); A("s_cbranch_scc1 L0_nonyq")
    A("s_mov_b32 exec_hi, 0")
    A(f"v_sub_f32 v7, v{TI}, v{AI}"); A(f"v_sub_f32 v8, v{AR}, v{TR}")
    A(f"v_mov_b32 v{TR}, v{AR}"); A(f"v_mov_b32 v{TI}, v{AI}")
    A("v_cvt_pk_bf16_f32 v7, v7, v8"); A("v_lshlrev_b32 v8, 1, v5")
    A("s_lshl_b32 s23, s16, 7"); A(f"s_add_u32 s23, s23, {G.TN_OFF}")
    A("buffer_store_short v7, v8, s[12:15], s23 offen sc1"); A("buffer_store_short_d16_hi v7, v8, s[12:15], s23 offen offset:64 sc1")
    A("s_mov_b32 exec_hi, -1")
    A.label("L0_nonyq")
    for part, b in enumerate((TR, TI)):
        for i in range(8): A(f"v_cvt_pk_bf16_f32 v{16+8*part+i}, v{b+2*i}, v{b+2*i+1}")
        A(f"ds_write_b128 v11, {v(16+8*part,4)} offset:{64*part}"); A(f"ds_write_b128 v11, {v(20+8*part,4)} offset:{64*part+16}")
    A("s_waitcnt lgkmcnt(0)")
    for i in range(4): A(f"ds_read_b128 {v(32+4*i,4)}, v3 offset:{8*144*i}")
    for i in range(4):
        A(f"s_waitcnt lgkmcnt({3-i})")
        A(f"buffer_store_dwordx4 {v(32+4*i,4)}, v9, s[12:15], s22 offen sc1")
        if i < 3: A(f"s_add_u32 s22, s22, {8*73728}")
    mark(A, 6)
    A("s_branch L0_fin")
    A.label("L0_helper"); A.hist = []
    A("s_sub_u32 s48, s2, 192"); A("s_lshr_b32 s49, s48, 1"); A("s_and_b32 s48, s48, 1")
    A("s_mul_i32 s52, s49, 578"); A("s_and_b32 s53, s52, 15"); A("s_sub_u32 s52, s52, s53")
    A(f"s_mul_i32 s54, s48, {32*18496}"); A("s_add_u32 s52, s52, s54")
    for n in range(5):
        A(f"v_add_u32 v1, {256*n}, v0"); A(f"v_mul_u32_u24 v2, {(1 << 18) // 37 + 1}, v1"); A("v_lshrrev_b32 v2, 18, v2")
        A(f"v_mul_u32_u24 v2, {18496 - 592}, v2"); A(f"v_lshl_add_u32 v{16+n}, v1, 4, v2")
    A("s_lshl_b32 s54, s19, 10")
    A("s_waitcnt lgkmcnt(0)")
    srd(A, 12, 26, G.WS_SIZE)
    if cfg.hx:
        srd(A, 8, 4, G.XB)
        A("s_and_b32 s16, s2, 63"); A("s_mul_i32 s18, s16, 1152")
        A("v_lshrrev_b32 v1, 3, v0"); A("v_and_b32 v2, 7, v0"); A("v_mul_u32_u24 v3, 73728, v1"); A("v_lshl_add_u32 v3, v2, 7, v3")
        A("buffer_load_dword v250, v3, s[8:11], s18 offen offset:128")
        A("s_waitcnt vmcnt(0)")
    srd(A, 8, 6, G.WB); srd(A, 20, 24, G.WB)
    for n in range(5):
        for arr in range(2):
            A(f"s_add_u32 m0, s54, {20480*arr + 4096*n}")
            A(f"buffer_load_dwordx4 v{16+n}, s[{8+12*arr}:{11+12*arr}], s52 offen lds")
    wpf()
    A("v_bfe_u32 v1, v0, 4, 2"); A(f"v_mul_u32_u24 v1, {4*592}, v1"); A("v_and_b32 v2, 15, v0"); A("v_lshl_add_u32 v1, v2, 2, v1")
    A("s_and_b32 s55, s19, 1"); A(f"s_mul_i32 s56, s55, {16*592}"); A("s_lshr_b32 s57, s19, 1"); A("s_lshl_b32 s58, s57, 6")
    A("s_add_u32 s56, s56, s58"); A("s_and_b32 s58, s53, 12"); A("s_add_u32 s56, s56, s58"); A("v_add_u32 v1, s56, v1")
    A("s_and_b32 s58, s53, 2"); A("s_lshl_b32 s58, s58, 1"); A("v_add_u32 v5, s58, v1")
    A("s_mul_i32 s58, s49, 9"); A("s_add_u32 s58, s58, s57"); A("s_lshl_b32 s58, s58, 13"); A("s_lshl_b32 s59, s48, 1"); A("s_add_u32 s59, s59, s55")
    A("s_lshl_b32 s59, s59, 10"); A("s_add_u32 s58, s58, s59"); A(f"s_add_u32 s58, s58, {G.WT_OFF}")
    A("v_and_b32 v2, 63, v0"); A("v_lshlrev_b32 v2, 4, v2"); A("v_add_u32 v3, 4096, v2")
    A("s_mov_b32 s59, 0x05040100"); A("s_mov_b32 s60, 0x07060302"); A("s_bitcmp1_b32 s53, 1")
    A("s_cselect_b32 s55, s60, s59"); A("s_cselect_b32 s56, s59, s60")
    A(f"s_waitcnt vmcnt({int(cfg.pf_w1) + int(cfg.pf_w2)})"); A("s_barrier")
    mark(A, 2)
    def unit(i, e):
        b = 24 + 16*i + 8*e
        for j in range(4):
            A(f"ds_read_b32 v{b+j}, v{5 if e else 1} offset:{592*j + 128*i}"); A(f"ds_read_b32 v{b+4+j}, v{5 if e else 1} offset:{20480 + 592*j + 128*i}")
    def out(i, e):
        b = 24 + 16*i + 8*e; o = 104 + 8*i + 4*e
        for j in range(4): A(f"v_perm_b32 v{o+j}, v{b+4+j}, v{b+j}, s{55+e}")
        A(f"buffer_store_dwordx4 {v(o,4)}, v{2+e}, s[12:15], s58 offen sc1")
        if e: A("s_add_u32 s58, s58, 16384")
    unit(0, 0)
    for n in range(8):
        unit((n + 1) // 2, (n + 1) % 2); A("s_waitcnt lgkmcnt(8)"); out(n // 2, n % 2)
    unit(4, 1)
    A("s_waitcnt lgkmcnt(0)")
    A("s_cmp_ge_u32 s19, 2"); A("s_cbranch_scc1 L0_h2")
    out(4, 0); out(4, 1)
    A("s_branch L0_fin")
    A.label("L0_h2")
    A("s_cmp_lg_u32 s19, 3"); A("s_cbranch_scc1 L0_fin")
    A("s_mov_b32 exec_hi, 0")
    A("v_and_b32 v1, 31, v0"); A("v_mul_u32_u24 v2, 592, v1"); A("v_add_u32 v2, s53, v2")
    A("ds_read_u16 v16, v2 offset:576"); A(f"ds_read_u16 v17, v2 offset:{20480+576}")
    A("v_lshrrev_b32 v3, 2, v1"); A("v_lshlrev_b32 v3, 8, v3"); A("v_and_b32 v4, 3, v1"); A("v_lshl_add_u32 v3, v4, 2, v3")
    A("s_lshr_b32 s57, s49, 4"); A("s_lshl_b32 s57, s57, 12"); A("s_and_b32 s58, s49, 15"); A("s_lshl_b32 s58, s58, 4"); A("s_add_u32 s57, s57, s58")
    A("s_lshl_b32 s58, s48, 11"); A("s_add_u32 s57, s57, s58"); A(f"s_add_u32 s57, s57, {G.WT_OFF + 288*8192}")
    A("s_waitcnt lgkmcnt(0)")
    A("v_lshl_or_b32 v16, v17, 16, v16")
    A("buffer_store_dword v16, v3, s[12:15], s57 offen sc1")
    A.label("L0_fin"); A.hist = []
    A("s_cmp_lg_u32 s19, 3"); A("s_cbranch_scc1 L0_fin2")
    A("s_mov_b64 exec, -1")
    A("v_and_b32 v1, 63, v0"); A("v_lshlrev_b32 v1, 4, v1"); A("s_lshl_b32 s22, s2, 10"); A(f"s_add_u32 s22, s22, {G.FLG_OFF}")
    for i in range(4): A(f"v_mov_b32 v{240+i}, 0")
    A("buffer_store_dwordx4 v[240:243], v1, s[12:15], s22 offen sc1")
    A.label("L0_fin2")
    G.stamp_end(A, 0, 26, cfg.tag)
    if cfg.endpf:
        A("s_mov_b64 exec, -1")
        srd(A, 36, 30, G.W1B)
        A("buffer_load_dword v255, v248, s[36:39], s42 offen")
    A.label("L0_end"); A("s_endpgm")
    return (name, (256, 256, 38016 + 3*4608), 256, 256)
```

```python
from asmlib import *
import gen as G
from gen import M32, f32, gen_frag, emit_pi, CH

def k2(A, NP=8):
    name = "fin_kernel"
    kernel_head(A, name)
    A("s_cmp_ge_u32 s2, 192"); A("s_cbranch_scc1 L3_end")
    G.stamp_begin(A)
    A("s_load_dwordx2 s[4:5], s[0:1], 0"); A("s_load_dwordx2 s[6:7], s[0:1], 56"); A("s_load_dwordx2 s[26:27], s[0:1], 72")
    A("v_lshrrev_b32 v4, 6, v0"); A("v_readfirstlane_b32 s28, v4")
    A("s_and_b32 s29, s2, 63"); A("s_lshr_b32 s30, s2, 6")
    A("s_lshr_b32 s31, s28, 1"); A("s_and_b32 s32, s28, 1")
    A("s_mul_i32 s33, s30, 3"); A("s_add_u32 s33, s33, s31")
    A("s_mul_i32 s34, s32, 9"); A("s_add_u32 s34, s34, s33")
    A("s_mul_i32 s35, s29, 36864")
    A("s_lshl_b32 s36, s34, 11"); A("s_add_u32 s36, s36, s35"); A(f"s_add_u32 s36, s36, {G.P_OFF}")
    A("v_and_b32 v1, 63, v0"); A("v_and_b32 v5, 31, v0"); A("v_bfe_u32 v6, v0, 5, 1"); A("v_lshlrev_b32 v2, 4, v1")
    A("v_lshrrev_b32 v3, 3, v1"); A("v_bfe_u32 v7, v1, 4, 1"); A("v_lshlrev_b32 v7, 2, v7"); A("v_and_b32 v8, 7, v1"); A("v_xor_b32 v7, v7, v8")
    A("v_mul_u32_u24 v3, 1152, v3"); A("v_lshl_add_u32 v3, v7, 4, v3")
    A("v_mul_u32_u24 v9, 73728, v5"); A("v_lshl_add_u32 v9, v6, 5, v9")
    A("s_mul_i32 s37, s29, 1152"); A("s_lshl_b32 s38, s34, 6"); A("s_add_u32 s37, s37, s38")
    A("s_waitcnt lgkmcnt(0)")
    srd(A, 8, 4, G.XB); srd(A, 12, 6, G.XB); srd(A, 16, 26, G.WS_SIZE)
    ULDS, VLDS, ELDS = 0, 36864, 0
    A("s_lshl_b32 s39, s28, 12")
    A("s_lshl_b32 s40, s28, 7"); A("s_add_u32 s40, s40, s35"); A(f"s_add_u32 s40, s40, {G.U_OFF}")
    for i in range(4):
        A(f"s_add_u32 m0, s39, {1024*i}"); A(f"s_add_u32 s41, s40, {8*1152*i}")
        A("buffer_load_dwordx4 v3, s[16:19], s41 offen lds")
    A("s_cmp_ge_u32 s28, 3"); A("s_cbranch_scc1 L3_a")
    for i in range(4):
        A(f"s_add_u32 m0, s39, {6*4096+1024*i}"); A(f"s_add_u32 s41, s40, {6*128+8*1152*i}")
        A("buffer_load_dwordx4 v3, s[16:19], s41 offen lds")
    A.label("L3_a")
    UNR = 16
    A("v_lshlrev_b32 v7, 4, v6"); A("s_lshl_b32 s41, s29, 7"); A(f"s_add_u32 s41, s41, {G.UN_OFF}")
    for i in range(4): A(f"buffer_load_dwordx4 {v(UNR+4*i,4)}, v7, s[16:19], s41 offen offset:{32*i}")
    XV = 32
    A(f"buffer_load_dwordx4 {v(XV,4)}, v9, s[8:11], s37 offen"); A(f"buffer_load_dwordx4 {v(XV+4,4)}, v9, s[8:11], s37 offen offset:16")
    def pload(fs):
        A(f"s_add_u32 s41, s36, {fs*0x240000}")
        for q in range(2): A(f"buffer_load_dwordx4 {a(8*(fs%8)+4*q,4)}, v2, s[16:19], s41 offen offset:{1024*q}")
    for fs in range(8): pload(fs)
    MR, MI, MN, T = 40, 48, 56, 64
    A("v_lshlrev_b32 v10, 6, v5"); A("v_add_u32 v10, s29, v10"); A("v_cvt_f32_u32 v10, v10"); A(f"v_mul_f32 v10, {f32(1.0/2048)}, v10")
    A("v_cvt_f32_u32 v11, v6"); A("v_mul_f32 v11, 0x41000000, v11"); A("v_mul_f32 v11, v11, v10")
    for ks in range(2): gen_frag(A, MR+4*ks, MI+4*ks, [16*ks + c for c in range(8)], 10, 11, T, False)
    for i in range(8): A(f"v_xor_b32 v{MN+i}, 0x80008000, v{MI+i}")
    A("v_bfe_u32 v12, v1, 2, 2"); A("v_lshl_add_u32 v12, v6, 3, v12"); A("v_bfe_u32 v13, v1, 3, 1"); A("v_lshlrev_b32 v13, 6, v13")
    A("v_lshl_add_u32 v12, v12, 7, v13"); A("v_bfe_u32 v13, v1, 4, 1"); A("v_lshl_add_u32 v12, v13, 5, v12")
    A("v_and_b32 v13, 3, v1"); A("v_lshl_add_u32 v12, v13, 3, v12"); A("v_add_u32 v12, s39, v12"); A("v_xor_b32 v13, 64, v12")
    A("s_lshl_b32 s42, s28, 11"); A(f"s_add_u32 s42, s42, {VLDS}"); A("v_add_u32 v14, s42, v2")
    UR, UI, VR, VI = 64, 72, 80, 96
    def vtile(off, voff, special):
        for ks in range(2):
            for e in range(2):
                A(f"ds_read_b64_tr_b16 {v(UR+4*ks+2*e,2)}, v12 offset:{off+2048*ks+512*e}")
                A(f"ds_read_b64_tr_b16 {v(UI+4*ks+2*e,2)}, v13 offset:{off+2048*ks+512*e}")
        A("s_waitcnt lgkmcnt(0)")
        vr, vi = v(VR, 16), v(VI, 16)
        for ks in range(2):
            A(f"{M32} {vr}, {v(UR+4*ks,4)}, {v(MR+4*ks,4)}, {'0' if ks == 0 else vr}")
            A(f"{M32} {vr}, {v(UI+4*ks,4)}, {v(MN+4*ks,4)}, {vr}")
        if special:
            A("s_cmp_lg_u32 s28, 0"); A("s_cbranch_scc1 L3_nos")
            A("s_mov_b32 exec_lo, 1"); A("s_mov_b32 exec_hi, 1")
            for i in range(8):
                A(f"v_xor_b32 v{UR+i}, 0x80008000, v{UNR+8+i}"); A(f"v_mov_b32 v{UI+i}, v{UNR+i}")
            A("s_mov_b64 exec, -1"); A("s_nop 1")
            A.label("L3_nos")
        for ks in range(2):
            A(f"{M32} {vi}, {v(UR+4*ks,4)}, {v(MI+4*ks,4)}, {'0' if ks == 0 else vi}")
            A(f"{M32} {vi}, {v(UI+4*ks,4)}, {v(MR+4*ks,4)}, {vi}")
        for part, b in enumerate((VR, VI)):
            for i in range(8): A(f"v_cvt_pk_bf16_f32 v{112+8*part+i}, v{b+2*i}, v{b+2*i+1}")
            for par in range(2):
                A(f"ds_write_b128 v14, {v(112+8*part+4*par,4)} offset:{voff+18432*par+1024*part}")
    G.mark(A, 1)
    A("s_waitcnt vmcnt(18)")
    G.mark(A, 2)
    vtile(0, 0, True)
    A("s_cmp_ge_u32 s28, 3"); A("s_cbranch_scc1 L3_b")
    vtile(6*4096, 6*2048, False)
    A.label("L3_b")
    G.mark(A, 3)
    GF = 112
    A("s_waitcnt lgkmcnt(0)")
    emit_pi(A, 10, 5, 11); A("s_lshl_b32 s42, s33, 5"); A("v_add_u32 v10, s42, v10")
    A("v_and_b32 v15, 1, v10")
    A("v_cvt_f32_u32 v10, v10"); A(f"v_mul_f32 v10, {f32(1.0/576)}, v10")
    A("v_lshlrev_b32 v11, 3, v6"); A("v_add_u32 v11, s32, v11"); A("v_cvt_f32_u32 v11, v11"); A("v_mul_f32 v11, v11, v10")
    for kt in range(9): gen_frag(A, GF+8*kt, GF+8*kt+4, [32*kt + 2*c for c in CH], 10, 11, T, True)
    A("s_cmp_lg_u32 s32, 0"); A("s_cbranch_scc1 L3_c")
    A("s_mov_b32 exec_hi, 0")
    A(f"v_and_b32 v{GF}, 0xffff0000, v{GF}"); A(f"v_or_b32 v{GF}, 0x3f00, v{GF}")
    A(f"v_and_b32 v{GF+4}, 0xffff0000, v{GF+4}"); A(f"v_or_b32 v{GF+4}, 0x3f00, v{GF+4}"); A("v_lshlrev_b32 v15, 15, v15"); A(f"v_or_b32 v{GF+4}, v15, v{GF+4}")
    A("s_mov_b32 exec_hi, -1")
    A.label("L3_c")
    SEL = 16
    emit_pi(A, 10, 5, 11); A("v_lshlrev_b32 v11, 3, v6"); A("v_sub_u32 v10, v10, v11")
    A("v_mov_b32 v11, 0x3f80"); A("v_mov_b32 v15, 0x3f800000")
    for i in range(8):
        e = 16*(i >> 2) + 2*(i & 3)
        A(f"v_cmp_eq_u32 vcc, {e}, v10"); A(f"v_cndmask_b32 v{SEL+i}, 0, v11, vcc")
        A(f"v_cmp_eq_u32 vcc, {e+1}, v10"); A(f"v_cndmask_b32 v{SEL+i}, v{SEL+i}, v15, vcc")
    BS, YA = 80, 96
    G.mark(A, 4)
    bs = v(BS, 16)
    def psum(fs, n):
        A(f"s_waitcnt vmcnt({n})")
        for q in range(2): A(f"{M32} {bs}, {v(SEL+4*q,4)}, {a(8*(fs%8)+4*q,4)}, {'0' if fs == 0 and q == 0 else bs}")
    if NP == 16:
        for fs in range(8):
            psum(fs, 14)
            pload(fs + 8)
    G.mark(A, 5)
    A("s_barrier")
    G.mark(A, 6)
    A("s_mul_i32 s42, s32, 18432"); A(f"s_add_u32 s42, s42, {VLDS}"); A("v_add_u32 v14, s42, v2")
    VF = 24
    ya = v(YA, 16)
    for n in range(5): A(f"ds_read_b128 {v(40+4*n,4)}, v14 offset:{1024*n}")
    for n in range(18):
        if n + 5 < 18: A(f"ds_read_b128 {v(40+4*((n+5)%6),4)}, v14 offset:{1024*(n+5)}")
        A(f"s_waitcnt lgkmcnt({min(5, 17-n)})")
        A(f"{M32} {ya}, {v(GF+4*n,4)}, {v(40+4*(n%6),4)}, {'0' if n == 0 else ya}")
    A("s_lshl_b32 s42, s28, 12"); A("v_add_u32 v14, s42, v2"); A("v_xor_b32 v15, 4096, v14")
    for i in range(4): A(f"ds_write_b128 v14, {v(YA+4*i,4)} offset:{ELDS+1024*i}")
    A("s_waitcnt lgkmcnt(0)"); A("s_barrier")
    for i in range(4): A(f"ds_read_b128 {v(40+4*i,4)}, v15 offset:{ELDS+1024*i}")
    G.mark(A, 7)
    for fs in range(NP - 8, NP): psum(fs, 2*(NP-1-fs))
    G.mark(A, 8)
    A("s_lshl_b32 s42, s32, 31"); A(f"s_xor_b32 s42, s42, {f32(2.0/(576*2048))}")
    A("s_waitcnt lgkmcnt(0)")
    for i in range(16):
        A(f"v_mul_f32 v{40+i}, {f32(2.0/(576*2048))}, v{40+i}"); A(f"v_fmac_f32 v{40+i}, s42, v{YA+i}")
    for i in range(8):
        A(f"v_cvt_pk_bf16_f32 v{56+i}, v{40+2*i}, v{41+2*i}")
    for i in range(8):
        A(f"v_lshlrev_b32 v{40+2*i}, 16, v{56+i}"); A(f"v_and_b32 v{41+2*i}, 0xffff0000, v{56+i}")
        A(f"v_lshlrev_b32 v{YA+2*i}, 16, v{XV+i}"); A(f"v_and_b32 v{YA+2*i+1}, 0xffff0000, v{XV+i}")
        A(f"v_pk_add_f32 {v(40+2*i,2)}, {v(40+2*i,2)}, {v(YA+2*i,2)}")
        A(f"v_cvt_pk_bf16_f32 v{56+i}, v{40+2*i}, v{41+2*i}")
        A(f"v_cvt_pk_bf16_f32 v{64+i}, v{BS+2*i}, v{BS+2*i+1}")
    for i in range(8):
        A(f"v_lshlrev_b32 v{40+2*i}, 16, v{56+i}"); A(f"v_and_b32 v{41+2*i}, 0xffff0000, v{56+i}")
        A(f"v_lshlrev_b32 v{YA+2*i}, 16, v{64+i}"); A(f"v_and_b32 v{YA+2*i+1}, 0xffff0000, v{64+i}")
        A(f"v_pk_add_f32 {v(40+2*i,2)}, {v(40+2*i,2)}, {v(YA+2*i,2)}")
        A(f"v_cvt_pk_bf16_f32 v{72+i}, v{40+2*i}, v{41+2*i}")
    A("buffer_store_dwordx4 v[72:75], v9, s[12:15], s37 offen"); A("buffer_store_dwordx4 v[76:79], v9, s[12:15], s37 offen offset:16")
    G.mark(A, 9)
    G.stamp_end(A, 3, 26, "k2")
    A.label("L3_end"); A("s_endpgm")
    return (name, (192, 384, 36864 * 2), 184 + 64, 184)
```

```python
from asmlib import *
import gen as G
from gen import M16, f32, mark
from gen_k0 import frag_ops
CH16 = [0, 1, 2, 3, 16, 17, 18, 19]

def mid_parts(WS, sw, lds_base, S0, V0, acc):
    sT, sJ, sK, sSrc, sSp, sDst, sDp, sL, sW, sX = S0
    vD, vO, vTr, vTi, vN, vG, vt, vt2, vFq, vBs, vSg, vL = range(V0, V0 + 12)
    WT = V0 + 12; WR = WT + 16; WI = WR + 16; C = WI + 16; S_ = C + 32; N_ = S_ + 32; T = N_ + 32
    ws = f"s[{WS}:{WS+3}]"
    P = {}
    P["setup"] = [
        f"s_lshr_b32 s{sT}, s{sw}, 1", f"s_lshl_b32 s{sL}, s{sT}, 13", f"s_add_u32 s{sL}, s{sL}, {lds_base}",
        f"s_lshl_b32 s{sT}, s{sT}, 8", f"s_add_u32 s{sT}, s{sT}, s2"]
    P["setup2"] = [
        f"s_mul_i32 s{sJ}, s{sT}, {(65536 + 8) // 9}", f"s_lshr_b32 s{sJ}, s{sJ}, 16", f"s_mul_i32 s{sK}, s{sJ}, 9", f"s_sub_u32 s{sK}, s{sT}, s{sK}",
        f"s_lshl_b32 s{sK}, s{sK}, 7",
        f"s_mul_i32 s{sSrc}, s{sJ}, 73728", f"s_add_u32 s{sSrc}, s{sSrc}, s{sK}", f"s_add_u32 s{sSrc}, s{sSrc}, {G.TP_OFF}",
        f"s_mul_i32 s{sDst}, s{sJ}, 1152", f"s_add_u32 s{sDst}, s{sDst}, s{sK}", f"s_add_u32 s{sDst}, s{sDst}, {G.U_OFF}",
        f"s_cmp_eq_u32 s{sT}, 288",
        f"s_cselect_b32 s{sSrc}, {G.TN_OFF}, s{sSrc}", f"s_cselect_b32 s{sDst}, {G.UN_OFF}, s{sDst}",
        f"s_mov_b32 s{sSp}, 1152", f"s_mov_b32 s{sDp}, 36864", f"s_cselect_b32 s{sSp}, 128, s{sSp}", f"s_cselect_b32 s{sDp}, 128, s{sDp}",
        f"s_and_b32 s{sK}, s{sw}, 1",
        f"s_lshl_b32 s{sW}, s{sT}, 1", f"s_add_u32 s{sW}, s{sW}, s{sK}", f"s_lshl_b32 s{sW}, s{sW}, 12", f"s_add_u32 s{sW}, s{sW}, {G.WT_OFF}",
        f"s_cmp_gt_u32 s{sT}, 288", f"s_cselect_b32 s{sSrc}, 0x40000000, s{sSrc}", f"s_cselect_b32 s{sDst}, 0x40000000, s{sDst}", f"s_cselect_b32 s{sW}, 0x40000000, s{sW}",
        f"v_bfe_u32 v{vt}, v0, 4, 1", f"v_lshlrev_b32 v{vt}, 2, v{vt}", f"v_bfe_u32 v{vt2}, v0, 5, 1", f"v_lshl_or_b32 v{vt}, v{vt2}, 1, v{vt}",
        f"v_and_b32 v{vt2}, 7, v0", f"v_xor_b32 v{vt}, v{vt}, v{vt2}", f"v_lshlrev_b32 v{vt}, 4, v{vt}",
        f"s_lshl_b32 s{sX}, s{sK}, 5", f"v_bfe_u32 v{vt2}, v0, 3, 3", f"v_add_u32 v{vt2}, s{sX}, v{vt2}",
        f"v_mad_u32_u24 v{vD}, v{vt2}, s{sSp}, v{vt}", f"v_mad_u32_u24 v{vO}, v{vt2}, s{sDp}, v{vt}",
        f"s_lshl_b32 s{sSp}, s{sSp}, 3", f"s_lshl_b32 s{sDp}, s{sDp}, 3",
        f"s_lshl_b32 s{sJ}, s{sK}, 12", f"s_add_u32 s{sJ}, s{sJ}, s{sL}",
        f"v_and_b32 v{vL}, 63, v0", f"v_lshlrev_b32 v{vL}, 4, v{vL}"]
    L = []
    for i in range(4):
        L += [f"s_add_u32 m0, s{sJ}, {1024*i}", ("VM", f"buffer_load_dwordx4 v{vD}, {ws}, s{sSrc} offen lds")]
        if i < 3: L.append(f"s_add_u32 s{sSrc}, s{sSrc}, s{sSp}")
    for mt in range(4): L.append(("VM", f"buffer_load_dwordx4 {v(WT+4*mt,4)}, v{vL}, {ws}, s{sW} offen offset:{1024*mt}"))
    P["loads"] = L
    L = [f"v_and_b32 v{vN}, 15, v0", f"v_bfe_u32 v{vG}, v0, 4, 2",
         f"v_and_b32 v{vSg}, 1, v0", f"v_mul_u32_u24 v{vSg}, 0x8000, v{vSg}", f"v_lshl_add_u32 v{vSg}, v{vSg}, 16, v{vSg}",
         f"v_cvt_f32_u32 v{vt}, v{vG}", f"v_mul_f32 v{vt}, 4.0, v{vt}"]
    for mt in range(2):
        L += [f"v_add_u32 v{vFq}, {16*mt}, v{vN}", f"v_cvt_f32_u32 v{vFq}, v{vFq}", f"v_mul_f32 v{vFq}, {f32(1.0/64)}, v{vFq}", f"v_mul_f32 v{vBs}, v{vt}, v{vFq}"]
        L += frag_ops(C + 8*mt, S_ + 8*mt, CH16, vFq, vBs, T, False)
    for b in (C, S_):
        for mt in range(2): L += [f"v_xor_b32 v{b+8*mt+4+j}, v{vSg}, v{b+8*mt+j}" for j in range(4)]
        L += [f"v_xor_b32 v{b+16+i}, 0x80000000, v{b+i}" for i in range(16)]
    L += [f"v_xor_b32 v{N_+i}, 0x80008000, v{S_+i}" for i in range(32)]
    L += [f"v_bfe_u32 v{vt}, v0, 2, 4", f"v_lshlrev_b32 v{vTr}, 7, v{vt}", f"v_and_b32 v{vt2}, 3, v0", f"v_lshl_add_u32 v{vTr}, v{vt2}, 3, v{vTr}",
          f"v_and_b32 v{vt2}, 2, v{vt}", f"v_bfe_u32 v{vt}, v{vt}, 2, 1", f"v_or_b32 v{vt}, v{vt}, v{vt2}", f"v_xor_b32 v{vt}, s{sK}, v{vt}",
          f"v_lshl_add_u32 v{vTr}, v{vt}, 5, v{vTr}", f"v_add_u32 v{vTr}, s{sL}, v{vTr}", f"v_xor_b32 v{vTi}, 64, v{vTr}"]
    L += [f"v_lshlrev_b32 v{vFq}, 7, v{vN}", f"v_lshl_add_u32 v{vFq}, v{vG}, 3, v{vFq}",
          f"v_and_b32 v{vt2}, 2, v{vN}", f"v_bfe_u32 v{vt}, v{vN}, 2, 1", f"v_or_b32 v{vt}, v{vt}, v{vt2}", f"v_xor_b32 v{vt}, s{sK}, v{vt}",
          f"v_lshl_add_u32 v{vFq}, v{vt}, 5, v{vFq}", f"v_add_u32 v{vFq}, s{sL}, v{vFq}", f"v_xor_b32 v{vBs}, 64, v{vFq}",
          f"v_add_u32 v{vL}, s{sJ}, v{vL}"]
    P["gen"] = L
    TR, TI, X = T, T + 8, T + 16
    L = []
    for ks in range(2):
        for e in range(2):
            L += [f"ds_read_b64_tr_b16 {v(TR+4*ks+2*e,2)}, v{vTr} offset:{4096*ks+2048*e}", f"ds_read_b64_tr_b16 {v(TI+4*ks+2*e,2)}, v{vTi} offset:{4096*ks+2048*e}"]
    unp = []
    for i in range(16): unp += [f"v_lshlrev_b32 v{WR+i}, 16, v{WT+i}", f"v_and_b32 v{WI+i}, 0xffff0000, v{WT+i}"]
    L += unp[:16]; unp = unp[16:]
    L.append("s_waitcnt lgkmcnt(0)")
    YR, YI = WT, WT + 8
    def wmul(mt):
        o = []
        for j in range(4):
            i = 4*mt + j; xr = X + 8*mt + j; xi = xr + 4
            o += [f"v_mul_f32 v{vt}, v{xr}, v{WR+i}", f"v_mul_f32 v{xr}, v{xr}, v{WI+i}", f"v_fma_f32 v{WI+i}, -v{xi}, v{WI+i}, v{vt}", f"v_fma_f32 v{WR+i}, v{xi}, v{WR+i}, v{xr}"]
        for j in range(2):
            o += [f"v_cvt_pk_bf16_f32 v{YR+2*mt+j}, v{WI+4*mt+2*j}, v{WI+4*mt+2*j+1}", f"v_cvt_pk_bf16_f32 v{YI+2*mt+j}, v{WR+4*mt+2*j}, v{WR+4*mt+2*j+1}"]
        return o
    fill = unp
    for mt in range(4):
        xr, xi = v(X + 8*mt, 4), v(X + 8*mt + 4, 4)
        if mt >= 2: fill += wmul(mt - 2)
        for ks in range(2):
            c, sn, nn = (v(b + 8*mt + 4*ks, 4) for b in (C, S_, N_))
            for x in (f"{M16} {xr}, {c}, {v(TR+4*ks,4)}, {'0' if ks == 0 else xr}", f"{M16} {xi}, {c}, {v(TI+4*ks,4)}, {'0' if ks == 0 else xi}",
                      f"{M16} {xr}, {sn}, {v(TI+4*ks,4)}, {xr}", f"{M16} {xi}, {nn}, {v(TR+4*ks,4)}, {xi}"):
                L.append(x); L += fill[:2]; fill = fill[2:]
    L += fill
    fill = wmul(2) + wmul(3)
    UA = T
    for ks in range(2):
        if ks == 1: L += fill; fill = []
        for nt in range(4):
            ur, ui = v(UA + 8*nt, 4), v(UA + 8*nt + 4, 4)
            c, sn, nn = (v(b + 8*nt + 4*ks, 4) for b in (C, S_, N_))
            for x in (f"{M16} {ur}, {v(YR+4*ks,4)}, {c}, {'0' if ks == 0 else ur}", f"{M16} {ui}, {v(YI+4*ks,4)}, {c}, {'0' if ks == 0 else ui}",
                      f"{M16} {ur}, {v(YI+4*ks,4)}, {nn}, {ur}", f"{M16} {ui}, {v(YR+4*ks,4)}, {sn}, {ui}"):
                L.append(x); L += fill[:2]; fill = fill[2:]
    for nt in range(4):
        for part in range(2):
            b = UA + 8*nt + 4*part; o = WR + 4*nt + 2*part
            L += [f"v_cvt_pk_bf16_f32 v{o}, v{b}, v{b+1}", f"v_cvt_pk_bf16_f32 v{o+1}, v{b+2}, v{b+3}",
                  f"ds_write_b64 v{vBs if part else vFq}, {v(o,2)} offset:{2048*nt}"]
    L.append("s_waitcnt lgkmcnt(0)")
    P["body1"] = L
    L = [f"ds_read_b128 {v(X+16+4*i,4)}, v{vL} offset:{1024*i}" for i in range(4)]
    for i in range(4):
        L += [f"s_waitcnt lgkmcnt({3-i})", ("VM", f"buffer_store_dwordx4 {v(X+16+4*i,4)}, v{vO}, {ws}, s{sDst} offen sc1")]
        if i < 3: L.append(f"s_add_u32 s{sDst}, s{sDst}, s{sDp}")
    P["body2"] = L
    P["vend"] = T + 48; P["free16"] = T + 24
    return P

def kmid(A):
    name = "mid_kernel"
    kernel_head(A, name)
    A("s_cmp_ge_u32 s2, 256"); A("s_cbranch_scc1 L1_end")
    G.stamp_begin(A)
    A("s_load_dwordx2 s[24:25], s[0:1], 72")
    A("v_lshrrev_b32 v4, 6, v0"); A("v_readfirstlane_b32 s19, v4")
    P = mid_parts(20, 19, 0, list(range(30, 40)), 8, None)
    def em(L):
        for x in L: A(x[1] if isinstance(x, tuple) else x)
    em(P["setup"])
    A("s_cmp_ge_u32 s30, 289"); A("s_cbranch_scc1 L1_idle")
    em(P["setup2"])
    A("s_waitcnt lgkmcnt(0)")
    srd(A, 20, 24, G.WS_SIZE)
    em(P["loads"]); mark(A, 1)
    em(P["gen"]); mark(A, 2)
    A("s_waitcnt vmcnt(0)"); A("s_barrier"); mark(A, 3)
    em(P["body1"]); mark(A, 4)
    A("s_barrier")
    em(P["body2"]); mark(A, 5)
    A("s_branch L1_fin")
    A.label("L1_idle")
    A("s_barrier"); A("s_barrier")
    A.label("L1_fin")
    A("s_waitcnt lgkmcnt(0)")
    G.stamp_end(A, 1, 24, "mid")
    A.label("L1_end"); A("s_endpgm")
    print("mid vend", P["vend"])
    return (name, (256, 256, 16384), 256, 256)
```

```python
from asmlib import *
import gen as G
from gen import M32, M16, f32
from gen_mid import mid_parts

class Cfg:
    EP = 2; LA = 5; NF = 8; BD = 2; WP = 2
    PRO = 11; RAMP = 1
    abl = ""
    dcost = 10; bcost = 24
    mid = True
    barmark = None
    touch = False
    pf = True
    d3 = 4
    dH = 10
    fl2 = 10
    chk2 = 7
BLK = 12288; NB = 13; ACT0 = 7; BIAS = NB * BLK
orderB = [(q, k) for k in ("O0","O1","P0","P1","O2","P2") for q in (0, 1)]
for q in range(2, 5): orderB += [(q, k) for k in ("O0","O1","O2","P0","P1","P2")]

def plan(cfg):
    groups = []
    for t in range(6): groups.append([("xs", 2*t), ("xs", 2*t+1), ("w1", 0, t)])
    seq = [[("w1", p, t)] for p in range(1, 4) for t in range(6)] + [[("wh", t)] for t in range(3)]
    seenP = set()
    for i, (q, k) in enumerate(orderB):
        l = []
        if k[0] == "P" and k not in seenP:
            seenP.add(k); l += [("pa", int(k[1]), 0), ("pa", int(k[1]), 1)]
        seq.append(l + [("w2", i)])
    i = 0
    while i < len(seq):
        n = cfg.EP
        if seq[i][-1][0] == "w2" and orderB[seq[i][-1][1]][0] == 4: n = 3
        if seq[i][-1][0] == "wh": n = 3 if seq[i][-1][1] == 0 and cfg.EP > 1 else n
        groups.append([x for l in seq[i:i+n] for x in l]); i += n
    loads = [x for g in groups for x in g]
    ep = {x: e for e, g in enumerate(groups) for x in g}
    NE = len(groups)
    firstO = {j: ep[("w2", orderB.index((0, f"O{j}")))] for j in range(3)}
    resv = {}
    for b in range(6):
        p = (3*b) // 4
        nxt = ("w1", p + 1, 0) if p < 3 else ("wh", 0)
        resv[ACT0 + b] = [(ep[nxt], firstO[b // 2] + 1)]
    if cfg.mid:
        for b in (4, 5): resv[ACT0 + b].append((-2, 0))
    chk = {0: ep[("w2", 0)], 1: ep[("w2", 0)], 2: ep[("w2", cfg.chk2)]}
    free_at = [-1] * NB; slot = {}; issue = {}
    todo = list(loads)
    for e in range(-1, NE):
        quota = cfg.PRO if e < 0 else len(groups[e]) + cfg.RAMP
        k = 0
        while k < len(todo) and quota > 0:
            x = todo[k]
            if x[0] == "pa" and e < chk[x[1]]:
                k += 1; continue
            rel = ep[x] + 1
            held = sum(1 for y in todo[:k])
            c = [s_ for s_ in range(NB) if free_at[s_] <= e and not any(e < hi and rel > lo for lo, hi in resv.get(s_, []))]
            if len(c) <= held: break
            s_ = max(c, key=lambda y: (y in resv, -y))
            slot[x] = s_; issue[x] = e; free_at[s_] = rel; todo.pop(k); quota -= 1
    assert not todo
    for x in loads: assert issue[x] < ep[x], (x, issue[x], ep[x])
    return loads, ep, slot, issue, NE, firstO, chk

def k1(A, cfg=Cfg):
    name = "mlp_kernel"
    loads, ep, slot, issue, NE, firstO, chk = plan(cfg)
    if getattr(cfg, "verbose", False): print("lead", [(x[0], ep[x] - issue[x]) for x in loads])
    kernel_head(A, name)
    A("s_cmp_ge_u32 s2, 256"); A("s_cbranch_scc1 L2_end")
    G.stamp_begin(A)
    A("s_load_dwordx4 s[4:7], s[0:1], 32"); A("s_load_dwordx2 s[24:25], s[0:1], 48"); A("s_load_dwordx2 s[26:27], s[0:1], 72")
    sW, sFP, sMT, sODD, sRH, sCH, sCX = 28, 29, 30, 31, 32, 33, 34
    sC1, sDIR, sM0, sXS, sT0, sSO, sACT, sACH, sPA, sP, sPH, sFL, sFP2, sC2, sDP, sS1, sS2 = range(35, 52)
    sROW = 52
    A("v_lshrrev_b32 v4, 6, v0"); A(f"v_readfirstlane_b32 s{sW}, v4")
    A(f"s_and_b32 s{sFP}, s2, 7"); A(f"s_bfe_u32 s{sODD}, s2, 0x10003"); A(f"s_lshr_b32 s{sMT}, s2, 4")
    A(f"s_lshr_b32 s{sRH}, s{sW}, 1"); A(f"s_and_b32 s{sCH}, s{sW}, 1"); A(f"s_xor_b32 s{sCX}, s{sCH}, s{sODD}")
    A(f"s_lshl_b32 s{sC2}, s{sODD}, 10")
    A(f"s_mul_i32 s{sC1}, s{sFP}, 1152"); A(f"s_add_u32 s{sC1}, s{sC1}, s{sC2}")
    A(f"s_lshl_b32 s{sDIR}, s{sODD}, 8"); A(f"s_sub_u32 s{sDIR}, 128, s{sDIR}")
    A(f"s_lshl_b32 s{sDP}, s{sDIR}, 5")
    A(f"s_mul_i32 s{sM0}, s{sW}, 3072")
    A(f"s_lshl_b32 s{sXS}, s{sMT}, 2"); A(f"s_add_u32 s{sXS}, s{sXS}, s{sW}"); A(f"s_mul_i32 s{sXS}, s{sXS}, 36864")
    if G.XS_OFF: A(f"s_add_u32 s{sXS}, s{sXS}, {G.XS_OFF}")
    A(f"s_mul_i32 s{sACT}, s2, 73728"); A(f"s_add_u32 s{sACT}, s{sACT}, {G.ACT_OFF}")
    A(f"s_lshl_b32 s{sT0}, s{sCX}, 11"); A(f"s_sub_u32 s{sACH}, s{sACT}, s{sT0}"); A(f"s_add_u32 s{sACH}, s{sACH}, 16384")
    A(f"s_xor_b32 s{sFP2}, s2, 8")
    A(f"s_mul_i32 s{sPA}, s{sFP2}, 73728"); A(f"s_mul_i32 s{sT0}, s{sRH}, 18432"); A(f"s_add_u32 s{sPA}, s{sPA}, s{sT0}")
    A(f"s_mul_i32 s{sT0}, s{sCH}, 3072"); A(f"s_add_u32 s{sPA}, s{sPA}, s{sT0}"); A(f"s_add_u32 s{sPA}, s{sPA}, {G.ACT_OFF}")
    A(f"s_lshl_b32 s{sFP2}, s{sFP2}, 10"); A(f"s_add_u32 s{sFP2}, s{sFP2}, {G.FLG_OFF}")
    A(f"s_lshl_b32 s{sFL}, s2, 2"); A(f"s_add_u32 s{sFL}, s{sFL}, s{sW}"); A(f"s_lshl_b32 s{sFL}, s{sFL}, 8"); A(f"s_add_u32 s{sFL}, s{sFL}, {G.FLG_OFF}")
    A(f"s_mul_i32 s{sP}, s{sFP}, {0x240000}"); A(f"s_lshl_b32 s{sT0}, s{sMT}, 1"); A(f"s_add_u32 s{sT0}, s{sT0}, s{sRH}"); A(f"s_mul_i32 s{sT0}, s{sT0}, 73728")
    A(f"s_add_u32 s{sP}, s{sP}, s{sT0}"); A(f"s_add_u32 s{sP}, s{sP}, {G.P_OFF}")
    A(f"s_lshl_b32 s{sT0}, s{sODD}, 1"); A(f"s_add_u32 s{sS2}, s{sT0}, s{sCH}")
    A(f"s_lshl_b32 s{sT0}, s{sS2}, 10"); A(f"s_add_u32 s{sPH}, s{sP}, s{sT0}"); A(f"s_add_u32 s{sPH}, s{sPH}, 16384")
    A(f"s_lshl_b32 s{sT0}, s{sODD}, 15"); A(f"s_add_u32 s{sP}, s{sP}, s{sT0}"); A(f"s_lshl_b32 s{sT0}, s{sCH}, 11"); A(f"s_add_u32 s{sP}, s{sP}, s{sT0}")
    A(f"s_mul_i32 s{sT0}, s{sFP}, {576*1152}"); A(f"s_cmp_eq_u32 s{sODD}, 0")
    for j in range(3):
        A(f"s_mov_b32 s{sS1}, {(480 - 96*j)*1152}")
        A(f"s_cselect_b32 s{sROW+j}, {96*j*1152}, s{sS1}"); A(f"s_cselect_b32 s{sROW+3+j}, s{sS1}, {96*j*1152}")
    for j in range(6): A(f"s_add_u32 s{sROW+j}, s{sROW+j}, s{sT0}")
    VL16, VBI, VBH, C1, C2, VFL, VFV, VPF = 1, 2, 3, 4, 5, 6, 7, 8
    VW1, VWH, VO, VP = 9, 12, 15, 18
    TRA, TRH, TRB, TRBH, LX0, LX1 = 21, 24, 27, 33, 36, 39
    VAW, VAH, VAG, ARD, ARP, ARL = 42, 44, 45, 47, 49, 50
    TMP, STG, FR, ACC, BSV = 52, 60, 76, 108, 224
    assert FR + 4*cfg.NF <= ACC and ACC + 112 <= BSV
    def bs(f): return a(4*f, 4) if f < 64 else v(BSV + 4*(f - 64), 4)
    xsreg = lambda kk, gi: bs(36 + kk if gi == 0 else kk)
    kpos = {"O0": 0, "O1": 3, "P0": 6, "P1": 9, "O2": 12, "P2": 15}
    MID = mid_parts(16, sW, (ACT0 + 4) * BLK, [58, 59, 60, 61, 62, 96, 97, 98, 99, 100], TMP, None)
    assert MID["vend"] <= 256
    t = list(range(MID["free16"], MID["free16"] + 16))
    A(f"v_and_b32 v{t[0]}, 63, v0"); A(f"v_lshlrev_b32 v{VL16}, 4, v{t[0]}")
    A(f"v_bfe_u32 v{t[1]}, v0, 4, 1"); A(f"v_lshlrev_b32 v{t[1]}, 2, v{t[1]}"); A(f"v_and_b32 v{t[2]}, 7, v0"); A(f"v_xor_b32 v{t[1]}, v{t[1]}, v{t[2]}")
    A(f"v_bfe_u32 v{t[2]}, v0, 3, 3"); A(f"s_mul_i32 s{sT0}, s{sW}, 24"); A(f"v_add_u32 v{t[3]}, s{sT0}, v{t[2]}")
    A(f"v_mul_u32_u24 v{VW1}, 9216, v{t[3]}"); A(f"v_lshl_add_u32 v{VW1}, v{t[1]}, 4, v{VW1}")
    for k in (1, 2): A(f"v_add_u32 v{VW1+k}, {k*(8*9216 - 1024)}, v{VW1}")
    A(f"v_lshrrev_b32 v{t[4]}, 4, v0"); A(f"v_sub_u32 v{t[5]}, 8, v{t[4]}"); A(f"s_cmp_eq_u32 s{sODD}, 1"); A("s_cselect_b64 vcc, -1, 0")
    A(f"v_cndmask_b32 v{t[4]}, v{t[4]}, v{t[5]}, vcc"); A(f"v_and_b32 v{t[5]}, 15, v0"); A(f"v_lshlrev_b32 v{t[5]}, 2, v{t[5]}"); A(f"v_lshl_add_u32 v{t[4]}, v{t[4]}, 6, v{t[5]}")
    A(f"s_lshl_b32 s{sS1}, s{sFP}, 1"); A(f"s_add_u32 s{sS1}, s{sS1}, s{sODD}"); A(f"s_mul_i32 s{sS1}, s{sS1}, 576")
    vm = []; lds = []
    st = dict(vmw=0, ldsw=-1, lastw=-1)
    def emit(x):
        if isinstance(x, tuple):
            if x[0] == "W": A(x[1]); lds.append("w"); st["lastw"] = len(lds) - 1
            elif x[0] == "R": A(x[1]); lds.append("r")
            elif x[0] == "F": x[1]()
            else:
                if x[1][0] == "st" and "s" in cfg.abl: return
                A(x[0]); vm.append(x[1])
        else: A(x)
    def wait_vm(upto):
        if upto + 1 > st["vmw"]:
            n = len(vm) - 1 - upto; assert n <= 63, n
            A(f"s_waitcnt vmcnt({n})"); st["vmw"] = upto + 1
    def wait_lds(upto):
        if upto > st["ldsw"]:
            n = min(14, len(lds) - 1 - upto)
            A(f"s_waitcnt lgkmcnt({n})"); st["ldsw"] = len(lds) - 1 - n
    colstate = dict(w1=0, w2=0)
    def dma(x):
        pre = [f"s_add_u32 m0, s{sM0}, {slot[x] * BLK}"]; fl = ""
        if x[0] == "xs": pre.append(f"s_add_u32 s{sSO}, s{sXS}, {3072 * x[1]}"); vo = [VL16] * 3; sr = 16
        elif x[0] == "pa": pre.append(f"s_add_u32 s{sSO}, s{sPA}, {6144 * x[1] + 36864 * x[2]}"); vo = [VL16] * 3; sr = 16; fl = " sc1"
        elif x[0] in ("w1", "wh"):
            p = x[1] if x[0] == "w1" else 4
            while colstate["w1"] < p: pre.append(f"s_add_u32 s{sC1}, s{sC1}, s{sDIR}"); colstate["w1"] += 1
            pre.append(f"s_add_u32 s{sSO}, s{sC1}, {x[-1] * (96 if p < 4 else 192) * 9216}")
            b = VW1 if p < 4 else VWH; vo = [b, b+1, b+2]; sr = 8
        else:
            q, k = orderB[x[1]]
            while colstate["w2"] < q: pre.append(f"s_add_u32 s{sC2}, s{sC2}, s{sDIR}"); colstate["w2"] += 1
            while colstate["w2"] > q: pre.append(f"s_sub_u32 s{sC2}, s{sC2}, s{sDIR}"); colstate["w2"] -= 1
            pre.append(f"s_add_u32 s{sSO}, s{sROW + int(k[1]) + (3 if k[0] == 'P' else 0)}, s{sC2}")
            b = VO if k[0] == "O" else VP; vo = [b, b+1, b+2]; sr = 12
        return [(pre if k == 0 else []) + [(f"buffer_load_dwordx4 v{vo[k]}, s[{sr}:{sr+3}], s{sSO} offen offset:{1024*k}{fl} lds", (x, k))] for k in range(3)]
    late = []
    L = late.append
    L(f"v_bfe_u32 v{t[6]}, v0, 2, 4"); L(f"s_mul_i32 s{sT0}, s{sW}, 48"); L(f"v_add_u32 v{t[6]}, s{sT0}, v{t[6]}"); L(f"v_mul_u32_u24 v{VWH}, 9216, v{t[6]}")
    L(f"v_and_b32 v{t[6]}, 3, v0"); L(f"v_lshl_add_u32 v{VWH}, v{t[6]}, 4, v{VWH}"); L(f"s_lshl_b32 s{sT0}, s{sODD}, 6"); L(f"v_add_u32 v{VWH}, s{sT0}, v{VWH}")
    for k in (1, 2): L(f"v_add_u32 v{VWH+k}, {k*(16*9216 - 1024)}, v{VWH}")
    L(f"v_bfe_u32 v{t[6]}, v0, 5, 1"); L(f"v_lshlrev_b32 v{t[6]}, 1, v{t[6]}"); L(f"v_xor_b32 v{t[1]}, v{t[1]}, v{t[6]}"); L(f"v_lshlrev_b32 v{t[1]}, 4, v{t[1]}")
    L(f"s_cmp_eq_u32 s{sODD}, 1"); L("s_cselect_b64 vcc, -1, 0")
    for k in range(3):
        L(f"v_add_u32 v{t[6]}, {8*k}, v{t[3]}")
        L(f"v_and_b32 v{t[7]}, 0x60, v{t[6]}"); L(f"v_lshlrev_b32 v{t[7]}, 1, v{t[7]}"); L(f"v_sub_u32 v{t[7]}, v{t[6]}, v{t[7]}"); L(f"v_add_u32 v{t[7]}, 64, v{t[7]}")
        L(f"v_cndmask_b32 v{t[8]}, v{t[6]}, v{t[7]}, vcc"); L(f"v_cndmask_b32 v{t[9]}, v{t[7]}, v{t[6]}, vcc")
        L(f"v_mul_u32_u24 v{t[8]}, 1152, v{t[8]}"); L(f"v_mul_u32_u24 v{t[9]}, 1152, v{t[9]}")
        L(f"v_add_u32 v{t[10]}, {2048 - 1024*k}, v{t[1]}")
        L(f"v_add_u32 v{VO+k}, v{t[8]}, v{t[10]}"); L(f"v_add_u32 v{VP+k}, v{t[9]}, v{t[10]}")
    r4, hh, cq, cc, u0, u1 = t[6:12]
    L(f"v_bfe_u32 v{r4}, v0, 2, 2"); L(f"v_bfe_u32 v{hh}, v0, 5, 1"); L(f"v_bfe_u32 v{cq}, v0, 4, 1"); L(f"v_and_b32 v{cc}, 3, v0")
    L(f"v_lshl_add_u32 v{u0}, v{hh}, 3, v{r4}")
    L(f"v_lshlrev_b32 v{TRH}, 6, v{u0}"); L(f"v_lshl_add_u32 v{TRH}, v{cq}, 5, v{TRH}"); L(f"v_lshl_add_u32 v{TRH}, v{cc}, 3, v{TRH}")
    L(f"v_lshlrev_b32 v{u0}, 7, v{u0}"); L(f"v_lshl_add_u32 v{u0}, v{cc}, 3, v{u0}")
    L(f"v_and_b32 v{u1}, 2, v{r4}"); L(f"v_or_b32 v{u1}, v{u1}, v{cq}"); L(f"v_lshl_add_u32 v{u0}, v{u1}, 5, v{u0}")
    L(f"s_lshl_b32 s{sT0}, s{sCH}, 6"); L(f"v_xor_b32 v{TRA}, s{sT0}, v{u0}")
    L(f"v_lshlrev_b32 v{u0}, 4, v{hh}"); L(f"v_lshl_add_u32 v{u0}, v{cq}, 2, v{u0}"); L(f"v_add_u32 v{u0}, v{u0}, v{r4}")
    L(f"v_lshlrev_b32 v{u0}, 7, v{u0}"); L(f"v_lshl_add_u32 v{u0}, v{cc}, 3, v{u0}"); L(f"v_lshl_add_u32 v{u0}, v{u1}, 5, v{u0}")
    L(f"v_xor_b32 v{TRB}, s{sT0}, v{u0}"); L(f"v_xor_b32 v{TRB+3}, 32, v{TRB}")
    L(f"s_lshl_b32 s{sT0}, s{sS2}, 5"); L(f"v_xor_b32 v{TRBH}, s{sT0}, v{u0}")
    L(f"v_add_u32 v{LX0}, s{sM0}, v{VL16}"); L(f"s_xor_b32 s{sT0}, s{sW}, 1"); L(f"s_mul_i32 s{sT0}, s{sT0}, 3072"); L(f"v_add_u32 v{LX1}, s{sT0}, v{VL16}")
    for b in (TRA, TRH, TRB, TRB+3, TRBH, LX0, LX1):
        L(f"v_add_u32 v{b+1}, 0x10000, v{b}"); L(f"v_add_u32 v{b+2}, 0x20000, v{b}")
    AB = ACT0 * BLK
    L(f"s_lshl_b32 s{sT0}, s{sW}, 10"); L(f"s_add_u32 s{sT0}, s{sT0}, {AB}"); L(f"v_add_u32 v{VAH}, s{sT0}, v{VL16}")
    L(f"s_lshl_b32 s{sT0}, s{sCX}, 13"); L(f"v_add_u32 v{VAW}, s{sT0}, v{VAH}"); L(f"v_xor_b32 v{VAW+1}, 1024, v{VAW}"); L(f"v_add_u32 v{VAH}, 0x10000, v{VAH}")
    L(f"s_lshl_b32 s{sS2}, s{sCX}, 11")
    for gi in range(2):
        L(f"s_xor_b32 s{sT0}, s{sW}, {gi}"); L(f"s_mul_i32 s{sT0}, s{sT0}, 18432"); L(f"s_add_u32 s{sT0}, s{sT0}, s{sS2}"); L(f"v_add_u32 v{VAG+gi}, s{sT0}, v{VL16}")
    L(f"v_and_b32 v{u0}, 15, v0"); L(f"v_lshlrev_b32 v{u0}, 4, v{u0}"); L(f"v_lshl_add_u32 v{u0}, v{cq}, 9, v{u0}")
    L(f"v_lshl_add_u32 v{ARL}, v{hh}, 10, v{u0}")
    L(f"v_lshl_add_u32 v{ARD}, v{hh}, 12, v{u0}"); L(f"s_lshl_b32 s{sT0}, s{sRH}, 11"); L(f"s_add_u32 s{sT0}, s{sT0}, {AB}"); L(f"v_add_u32 v{ARD}, s{sT0}, v{ARD}")
    L(f"v_add_u32 v{ARD+1}, 0x10000, v{ARD}")
    L(f"v_lshlrev_b32 v{VBH}, 4, v{hh}"); L(f"v_add_u32 v{VBH}, {BIAS}, v{VBH}"); L(f"s_lshl_b32 s{sT0}, s{sCX}, 7"); L(f"v_add_u32 v{VBI}, s{sT0}, v{VBH}")
    L(f"v_mov_b32 v{C1}, {f32(-2*G.LN2)}"); L(f"v_mov_b32 v{C2}, {f32(G.LN2)}")
    L(f"v_lshlrev_b32 v{VFL}, 8, v{cc}")
    VPF2 = 51
    L(f"s_lshr_b32 s{sT0}, s2, 3"); L(f"s_mul_i32 s{sS2}, s{sT0}, 162"); L(f"s_mul_i32 s{sS1}, s{sW}, 42"); L(f"s_add_u32 s{sS2}, s{sS2}, s{sS1}")
    L(f"s_mul_i32 s{sS1}, s{sFP}, 5184"); L(f"s_add_u32 s{sS2}, s{sS2}, s{sS1}")
    L(f"v_and_b32 v{u0}, 7, v0"); L(f"v_min_u32 v{u1}, 6, v{u0}"); L(f"v_add_u32 v{u1}, s{sS2}, v{u1}"); L(f"v_lshlrev_b32 v{VPF2}, 7, v{u1}")
    L(f"s_mul_i32 s{sS1}, s{sW}, 5"); L(f"v_min_u32 v{u1}, 4, v{u0}"); L(f"v_add_u32 v{u1}, s{sS1}, v{u1}"); L(f"v_min_u32 v{u1}, 17, v{u1}")
    L(f"s_mul_i32 s{sT0}, s{sT0}, 18"); L(f"v_add_u32 v{u1}, s{sT0}, v{u1}"); L(f"v_mul_u32_u24 v{VPF}, 9216, v{u1}")
    L(f"s_mul_i32 s{sS1}, s{sFP}, 1152"); L(f"v_add_u32 v{VPF}, s{sS1}, v{VPF}")

    def vmtag(Lst, tag): return [(x[1], (tag, i)) if isinstance(x, tuple) else x for i, x in enumerate(Lst)]
    if cfg.mid:
        for x in MID["setup"] + MID["setup2"]: A(x)
    A("s_waitcnt lgkmcnt(0)")
    srd(A, 16, 26, G.WS_SIZE); srd(A, 8, 4, G.W1B); srd(A, 20, 6, 4608 * 2)
    A("s_sub_u32 s12, s24, 2048"); A("s_subb_u32 s13, s25, 0"); A(f"s_mov_b32 s14, {G.W1B + 2048}"); A("s_mov_b32 s15, 0x20000")
    if cfg.mid:
        for x in vmtag(MID["loads"], "mid"): emit(x)
    emit((f"buffer_load_dword v{t[12]}, v{t[4]}, s[20:23], s{sS1} offen", ("bias", 0)))
    nfirst = len(vm)
    if cfg.touch:
        A(f"v_mov_b32 v{VFL}, 0")
        for sr, so in ((16, sACT), (16, sPA), (16, sP), (16, sFL), (12, sROW), (12, sROW + 3)):
            emit((f"buffer_load_dword v{VFV}, v{VFL}, s[{sr}:{sr+3}], s{so} offen offset:2048", ("touch", so)))
    pro = [d for x in loads if issue[x] < 0 for d in dma(x)]
    def weave(code, every):
        for i, x in enumerate(code):
            emit(x)
            if i % every == every - 1 and pro and not (isinstance(x, str) and (x.startswith("s_cmp") or x.startswith("s_cselect"))):
                for y in pro.pop(0): emit(y)
    for _ in range(6):
        for y in pro.pop(0): emit(y)
    weave(late, 24)
    if cfg.mid: weave(MID["gen"], 20)
    mk_ = (lambda i: G.mark(A, i)) if cfg.barmark is None else (lambda i: None)
    mk_(1)
    wait_vm(nfirst - 1)
    bi = [f"v_lshlrev_b32 v{t[0]}, 16, v{t[12]}", f"v_and_b32 v{t[1]}, 0xffff0000, v{t[12]}", f"v_mul_f32 v{t[0]}, {f32(G.LOG2E)}, v{t[0]}", f"v_mul_f32 v{t[1]}, {f32(G.LOG2E)}, v{t[1]}",
          f"v_lshlrev_b32 v{t[2]}, 3, v0", f"v_add_u32 v{t[2]}, {BIAS}, v{t[2]}", "v_cmp_gt_u32 vcc, 144, v0", f"s_and_saveexec_b64 s[{sS1}:{sS2}], vcc",
          f"ds_write_b64 v{t[2]}, {v(t[0],2)}", f"s_mov_b64 exec, s[{sS1}:{sS2}]"]
    assert sS1 % 2 == 0
    for x in bi: A(x)
    if cfg.mid:
        A("s_barrier")
        weave(MID["body1"], 16)
        A("s_barrier")
        for x in vmtag(MID["body2"], "mids"): emit(x)
    while pro:
        for y in pro.pop(0): emit(y)
    A("s_waitcnt lgkmcnt(0)")
    mk_(2)

    def tile(i): return ACC + 16 * i
    def win(base, o): return f"v{base + (o >> 16)} offset:{o & 0xffff}"
    units = []
    for p in range(4):
        for kk in range(36):
            x = ("w1", p, kk // 6); T0 = 2 * (p & 1); rd = []
            if kk == 0:
                rd += [f"ds_read_b128 {v(tile(T0+gi)+4*q4,4)}, v{VBI} offset:{256*p+32*q4}" for gi in range(2) for q4 in range(4)]
            if p == 0:
                o = slot[("xs", kk // 3)] * BLK + 1024 * (kk % 3)
                rd += [f"ds_read_b128 {xsreg(kk,0)}, {win(LX0, o)}", f"ds_read_b128 {xsreg(kk,1)}, {win(LX1, o)}"]
            units.append(dict(ep=ep[x], rd=rd, tr=(TRA, slot[x]*BLK + 2048*(kk % 6), 512), ph="A", p=p, kk=kk,
                              mf=[(M32, v(tile(T0+gi), 16), xsreg(kk, gi), v(tile(T0+gi), 16)) for gi in range(2)]))
    for kk in range(36):
        x = ("wh", kk // 12)
        rd = [f"ds_read_b128 {v(tile(4)+4*q4,4)}, v{VBH} offset:{1024+32*q4}" for q4 in range(4)] if kk == 0 else []
        units.append(dict(ep=ep[x], rd=rd, tr=(TRH, slot[x]*BLK + 1024*(kk % 12), 256), ph="A", p=4, kk=kk, mf=[(M32, v(tile(4), 16), xsreg(kk, 0), v(tile(4), 16))]))
    nA = len(units)
    accB = {0: 0, 1: 5, 2: 2, 3: 0, 4: 5}
    seen = set(); cnt = {}
    for i, (q, k) in enumerate(orderB):
        x = ("w2", i); j = int(k[1]); cnt[q] = cnt.get(q, 0) + 1
        for c in range(3):
            f0 = 4 * (kpos[k] + c)
            for ct in range(2 if q < 4 else 1):
                rd = []
                if k not in seen and ct == 0:
                    if k[0] == "O":
                        rd += [f"ds_read_b128 {bs(f0+rt)}, {win(ARD, (3*j+c)*8192 + (rt >> 1)*1024 + (rt & 1)*256)}" for rt in range(4)]
                    else:
                        if c == 0:
                            rd += [f"s_cmp_eq_u32 s{sRH}, 0", f"s_mov_b32 s{sT0}, {slot[('pa', j, 1)]*BLK}", f"s_cselect_b32 s{sT0}, {slot[('pa', j, 0)]*BLK}, s{sT0}", f"v_add_u32 v{ARP}, s{sT0}, v{ARL}"]
                        rd += [f"ds_read_b128 {bs(f0+rt)}, v{ARP} offset:{c*2048 + (rt >> 1)*6144 + (rt & 1)*256}" for rt in range(4)]
                tl = accB[q] + ct
                first = cnt[q] == 1 and c == 0
                units.append(dict(ep=ep[x], rd=rd, tr=((TRB + 3*ct) if q < 4 else TRBH, slot[x]*BLK + 4096*c, 1024), ph="B", q=q, ct=ct, blk=i, first=first,
                                  last=(cnt[q] == 6 and c == 2), tl=tl,
                                  mf=[(M16, v(tile(tl)+4*rt, 4), bs(f0+rt), "0" if first else v(tile(tl)+4*rt, 4)) for rt in range(4)]))
        seen.add(k)
    NU = len(units)
    rp = [0] * NU; bp = {}
    LAu = lambda j: cfg.LA + (2 if len(units[j]["mf"]) == 1 else 0)
    for j in range(NU):
        r = max(-1, j - min(LAu(j), cfg.NF - 1))
        if j:
            r = max(r, rp[j-1])
            if j > 1 and rp[j-2] >= 0: r = max(r, rp[j-2] + 1)
            if units[j]["ep"] != units[j-1]["ep"]:
                r = max(r, rp[j-1] + (cfg.BD + (1 if len(units[j]["mf"]) == 1 else 0))); bp[units[j]["ep"]] = r
        else: bp[0] = -1
        rp[j] = r
        assert r <= j - 2 or j < 2, (j, r)
    gap0 = []; ng = 0
    for u in units: gap0.append(ng); ng += len(u["mf"])
    gap0.append(ng)
    fixed = [[] for _ in range(ng)]
    cap = []
    for u in units: cap += [24 if u["ph"] == "A" else 8] * len(u["mf"])
    def barrier(e):
        mine = [i for i, y in enumerate(vm) if y[0] in ep and ep[y[0]] == e]
        bm = cfg.barmark is not None and 0 <= e - cfg.barmark < 4
        wait_lds(len(lds) - 1)
        if bm: G.mark(A, 1 + 3*(e - cfg.barmark))
        if mine: wait_vm(max(mine))
        if bm: G.mark(A, 2 + 3*(e - cfg.barmark))
        if "b" not in cfg.abl or e < 7: A("s_barrier")
        if bm: G.mark(A, 3 + 3*(e - cfg.barmark))
    fidx = {}
    def rdlist(j):
        u = units[j]; base, o, de = u["tr"]; fr = FR + 4 * (j % cfg.NF)
        out = [("R", x) if x.startswith("ds_") else x for x in u["rd"]]
        out += [("R", f"ds_read_b64_tr_b16 {v(fr,2)}, {win(base, o)}"), ("R", f"ds_read_b64_tr_b16 {v(fr+2,2)}, {win(base, o + de)}")]
        out.append(("F", lambda j=j: fidx.__setitem__(j, len(lds) - 1)))
        return out
    head = []
    for i in range(-1, NU):
        items = []
        for e, b in bp.items():
            if b == i: items.append((cfg.bcost, ("F", lambda e=e: barrier(e))))
        nb = len(items)
        for j in range(NU):
            if rp[j] == i: items += [(0 if x[0] == "F" else 4, x) for x in rdlist(j)]
        if i < 0: head = items; continue
        n = len(units[i]["mf"])
        real = [it for it in items[nb:] if it[0]]
        g = 0; k = 0
        fixed[gap0[i]] += items[:nb]
        first_g = 1 if (nb and n > 1) else 0
        glue = False
        for it in items[nb:]:
            if it[0] and not glue:
                g = first_g + k * (n - first_g) // max(1, len(real))
            if it[0]: k += 1
            glue = isinstance(it[1], str) and it[1].startswith(("s_cmp", "s_mov", "s_cselect"))
            fixed[gap0[i] + g].append(it)
    nlab = [0]
    def poll_issue(): emit((f"buffer_load_dword v{VFV}, v{VFL}, s[16:19], s{sFP2} offen sc1", ("poll", len(vm))))
    def poll_check(val):
        wait_vm(max(i for i, y in enumerate(vm) if y[0] == "poll"))
        n = nlab[0]; nlab[0] += 1
        A(f"v_cmp_le_u32 vcc, {val}, v{VFV}"); A("s_cmp_eq_u64 vcc, -1"); A(f"s_cbranch_scc0 L2_spin{n}"); A.label(f"L2_ok{n}")
    def gcost(g): return sum(c for c, _ in fixed[g])
    extra = {}
    if cfg.pf:
        for i, ln in enumerate((2, 6, 3, 5, 4)):
            extra.setdefault(1 + i, []).append([(f"buffer_load_dword v{VFV}, v{VPF}, s[8:11], 0 offen offset:{128*ln}", ("pf", i))])
        for i in range(6):
            extra.setdefault(7 + i, []).append([f"s_mov_b32 s{sT0}, {896*i}", (f"buffer_load_dword v{VFV}, v{VPF2}, s[12:15], s{sT0} offen offset:2048", ("pf2", i))])
    for e in range(NE):
        lo = gap0[max(0, bp[e])] + 1; hi = gap0[bp[e+1]] if e + 1 < NE else ng
        xs_ = [x for x in loads if issue[x] == e and not ("d" in cfg.abl and ep[x] > 8)]
        val = {chk[0]: 1, chk[2]: 2}.get(e)
        todo = [[("F", poll_issue)]] if val else []
        for x in xs_:
            if x[0] != "pa": todo += [("D", x, k) for k in range(3)]
        if val:
            while len(todo) < 4: todo.append([])
            todo.append([("F", lambda val=val: poll_check(val))])
        for x in xs_:
            if x[0] == "pa": todo += [("D", x, k) for k in range(3)]
        todo += extra.get(e, [])
        prev = lo - 1
        for k, y in enumerate(todo):
            w0 = lo + k * (hi - lo) // len(todo); w1_ = max(w0 + 1, lo + (k + 1) * (hi - lo) // len(todo))
            g = min(range(w0, min(w1_, hi)), key=lambda g: gcost(g) - cap[g]) if w0 < hi else hi - 1
            if y: fixed[g].append((cfg.dcost + (8 if (y[0] == "D" and y[2] == 0) else 0), ("DM", y)))
    def mish(tiles, p):
        out = []; els = [(gi, tl, e) for gi, tl in enumerate(tiles) for e in range(16)]
        tm = lambda n: TMP + n % 8
        if p < 4: out.append(f"s_add_u32 s{sS1}, s{sACT}, {4096*p}")
        for n in range(len(els) + 1):
            if n < len(els) and "m" not in cfg.abl: out.append(f"v_exp_f32 v{tm(n)}, v{tile(els[n][1])+els[n][2]}")
            if n >= 1:
                gi, tl, e = els[n-1]
                if "m" not in cfg.abl: out += [f"v_fma_f32 v{tm(n-1)}, v{tm(n-1)}, v{C1}, v{C2}", f"v_mul_f32 v{tm(n-1)}, v{tm(n-1)}, v{tile(tl)+e}"]
                if e & 1: out.append(f"v_cvt_pk_bf16_f32 v{STG+8*gi+e//2}, v{tm(n-2)}, v{tm(n-1)}")
            if n < len(els) and "m" not in cfg.abl:
                out += [f"v_add_f32 v{tm(n)}, 1.0, v{tm(n)}", f"v_fma_f32 v{tm(n)}, v{tm(n)}, v{tm(n)}, 1.0", f"v_rcp_f32 v{tm(n)}, v{tm(n)}"]
            if n >= 1 and els[n-1][2] % 8 == 7:
                gi, tl, e = els[n-1]; pc = e // 8; src = v(STG + 8*gi + 4*pc, 4)
                out.append((f"buffer_store_dwordx4 {src}, v{VAG+gi}, s[16:19], s{sS1 if p < 4 else sACH} offen offset:{1024*pc} sc1", ("act", p)))
                out.append(("W", f"ds_write_b128 v{VAW+gi if p < 4 else VAH}, {src} offset:{(16384*p if p < 4 else 0) + 4096*pc}"))
        return out
    def flag(p, val):
        def f():
            wait_vm(max(i for i, y in enumerate(vm) if y == ("act", p)))
            A(f"v_mov_b32 v{TMP}, {val}"); A(f"v_lshrrev_b32 v{TMP+1}, 2, v{VL16}")
            emit((f"buffer_store_dword v{TMP}, v{TMP+1}, s[16:19], s{sFL} offen sc1", ("flag", val)))
        return [("F", f)]
    pstate = [0]
    def epi(tl, q, ct):
        out = []
        if ct == 0:
            if q == 4: out.append(f"s_mov_b32 s{sP}, s{sPH}")
            elif q: out.append(f"s_add_u32 s{sP}, s{sP}, s{sDP}")
            out.append(f"s_add_u32 s{sS2}, s{sP}, 36864")
        for gg in range(2):
            o = STG + 8*ct + 4*gg; b = tile(tl) + 8*gg
            out += [f"v_cvt_pk_bf16_f32 v{o+j}, v{b+2*j}, v{b+2*j+1}" for j in range(4)]
        for gg in range(2):
            o = STG + 8*ct + 4*gg
            out += [f"v_permlane16_swap_b32 v{o}, v{o+2}", f"v_permlane16_swap_b32 v{o+1}, v{o+3}"]
            out.append((f"buffer_store_dwordx4 {v(o,4)}, v{VL16}, s[16:19], s{sP if gg == 0 else sS2} offen offset:{1024*ct} sc1", ("st", q)))
        return out
    jobs = []
    for p in range(3):
        nxt = 36 * (p + 2)
        end = gap0[rp[nxt]] if p < 2 else gap0[144]
        jobs.append((gap0[36*(p+1) + 1], end, mish([2*(p & 1), 2*(p & 1) + 1], p)))
    f1 = 144 + 1
    jobs.append((gap0[144 + 2], gap0[nA + cfg.d3], mish([2, 3], 3)))
    jobs.append((gap0[nA + cfg.d3], gap0[nA + cfg.dH], mish([4], 4)))
    jobs.append((gap0[nA + cfg.dH + cfg.fl2], gap0[nA + cfg.dH + cfg.fl2] + 2, flag(4, 2)))
    assert nA + cfg.dH <= bp[firstO[2]]
    for i, u in enumerate(units):
        if u.get("last"):
            s0 = max(gap0[i + 1] + 2, jobs[-1][1]) if i + 1 < NU else ng
            jobs.append((s0, max(s0, min(ng, s0 + 11)), epi(u["tl"], u["q"], u["ct"])))
    def jcost(x):
        if isinstance(x, tuple): return 4 if x[0] == "W" else cfg.dcost
        return 8 if x.startswith(("v_exp", "v_rcp")) else 4
    placed = [[] for _ in range(ng + 1)]
    for lo, hi, lst in jobs:
        if lo >= hi:
            placed[min(lo, ng)] += lst; continue
        wt = [cap[g] + 8 for g in range(lo, hi)]
        tot = sum(jcost(x) for x in lst) + sum(gcost(g) + 8 for g in range(lo, hi))
        cum = 0; cw = 0; k = 0
        for g in range(lo, hi):
            cum += gcost(g) + 8; cw += wt[g - lo]
            while k < len(lst) and cum + jcost(lst[k]) / 2 <= tot * cw / sum(wt):
                placed[g].append(lst[k]); cum += jcost(lst[k]); k += 1
        placed[hi - 1] += lst[k:]
    dmc = {}
    def run(item):
        if item[0] == "DM":
            y = item[1]
            if y[0] == "D":
                if y[2] == 0: dmc[y[1]] = dma(y[1])
                for z in dmc[y[1]][y[2]]: emit(z)
            else:
                for z in y: emit(z)
        else: emit(item)
    for _, x in head: run(x) if isinstance(x, tuple) else emit(x)
    marks = {0: 3, 36: 4, 72: 5, 108: 6, 144: 7, nA: 8, nA + 36: 9, nA + 72: 10, nA + 108: 11}
    flag1_at = 144 + 14
    for i, u in enumerate(units):
        if i in marks: mk_(marks[i])
        if fidx[i] > st["ldsw"]:
            j = i
            while j + 1 < NU and j + 1 < i + cfg.WP and (j + 1) in fidx and rp[j + 1] <= i - 2: j += 1
            wait_lds(fidx[j])
        for mi, (op, d, b, c) in enumerate(u["mf"]):
            A(f"{op} {d}, {v(FR+4*(i%cfg.NF),4)}, {b}, {c}")
            g = gap0[i] + mi
            for _, x in fixed[g]: run(x) if isinstance(x, tuple) else emit(x)
            for x in placed[g]: emit(x)
        if i == flag1_at:
            wait_vm(max(k for k, y in enumerate(vm) if y == ("act", 2)))
            A(f"v_mov_b32 v{VPF}, 1"); A(f"v_lshrrev_b32 v{VPF2}, 2, v{VL16}")
            emit((f"buffer_store_dword v{VPF}, v{VPF2}, s[16:19], s{sFL} offen sc1", ("flag", 1)))
    for x in placed[ng]: emit(x)
    mk_(12)
    G.stamp_end(A, 2, 26, "k1")
    A.label("L2_end"); A("s_endpgm")
    for n in range(nlab[0]):
        A.label(f"L2_spin{n}"); A.hist = []
        A(f"s_mov_b32 s{sT0}, 0")
        A.label(f"L2_sl{n}")
        A(f"buffer_load_dword v{VFV}, v{VFL}, s[16:19], s{sFP2} offen sc1"); A("s_waitcnt vmcnt(0)")
        A(f"v_cmp_le_u32 vcc, {n+1}, v{VFV}"); A("s_nop 1"); A("s_cmp_eq_u64 vcc, -1"); A(f"s_cbranch_scc1 L2_ok{n}")
        A(f"s_add_u32 s{sT0}, s{sT0}, 1"); A(f"s_cmp_lt_u32 s{sT0}, 0x10000"); A(f"s_cbranch_scc1 L2_sl{n}")
        A(f"s_branch L2_ok{n}")
    return (name, (256, 256, BIAS + 1152), 512, 256)
```

```python
import gen, gen_k0, gen_q, gen_k2
def mk(path, stamps, c0={}, c1={}, rt=False):
    gen.STAMPS = stamps
    gen.MT = "s_memrealtime" if rt else "s_memtime"
    cfg0 = type("C0", (gen_k0.Cfg0,), c0); cfg1 = type("C1", (gen_q.Cfg,), c1)
    gen.build([lambda A: gen_k0.k0(A, cfg0), lambda A: gen_q.k1(A, cfg1), gen_k2.k2], path)
if __name__ == "__main__":
    mk("t08.s", True, c1=dict(verbose=True))
    mk("t08_t.s", True, rt=True)
```

```python
from mk8 import mk
mk("o_a.s", False)
mk("o_b.s", False, c0=dict(w1cols=9, endpf=True), c1=dict(pf=False))
mk("o_c.s", False, c1=dict(pf=False))
mk("o_d.s", False, c0=dict(w1cols=9, pf_w2=True, latepf=False, hx=False), c1=dict(pf=False))
```

```python
import re
TRANS = ("v_exp_f32", "v_log_f32", "v_rcp_f32", "v_rsq_f32", "v_sqrt_f32", "v_sin_f32", "v_cos_f32")
def regs_of(tok):
    tok = tok.strip()
    tok = tok.lstrip("-")
    if tok.startswith("abs(") or tok.startswith("neg("): tok = tok[4:-1]
    tok = tok.strip("|")
    m = re.fullmatch(r"([vas])\[(\d+):(\d+)\]", tok)
    if m: return {(m.group(1), i) for i in range(int(m.group(2)), int(m.group(3)) + 1)}
    m = re.fullmatch(r"([vas])(\d+)", tok)
    if m: return {(m.group(1), int(m.group(2)))}
    if tok == "vcc": return {("s", "vcc")}
    if tok == "exec": return {("s", "exec")}
    if tok == "m0": return {("s", "m0")}
    return set()
class Ins:
    def __init__(self, text):
        self.text = text
        t = text.split(";")[0].strip()
        p = t.split(None, 1)
        self.op = p[0]
        rest = p[1] if len(p) > 1 else ""
        ops = [x.strip() for x in re.split(r",(?![^\[]*\])", rest)] if rest else []
        if ops:
            last = ops[-1].split()
            self.mods = " ".join(last[1:]); ops[-1] = last[0]
        else: self.mods = ""
        self.ops = ops
        op = self.op.replace("_e32", "").replace("_e64", "").replace("_dpp", "")
        self.base = op
        self.kind = "other"; self.w = set(); self.r = set(); self.srcC = set(); self.passes = 0
        self.dpp = "quad_perm" in text or "row_" in text
        R = [regs_of(o) for o in ops]
        if op.startswith("v_mfma"):
            self.kind = "mfma"; self.w = R[0]; self.r = R[1] | R[2] | R[3]; self.srcAB = R[1] | R[2]; self.srcC = R[3]
            self.passes = 8 if "32x32x16" in op else 4
        elif op.startswith("v_cmp"):
            self.kind = "valu"; self.w = R[0]; self.r = set().union(*R[1:])
        elif op in ("v_readfirstlane_b32", "v_readlane_b32"):
            self.kind = "valu"; self.w = R[0]; self.r = set().union(*R[1:])
        elif op.startswith("v_permlane"):
            self.kind = "valu"; self.w = R[0] | R[1]; self.r = R[0] | R[1]
        elif op.startswith("v_"):
            self.kind = "trans" if op in TRANS else "valu"
            self.w = R[0]; self.r = set().union(*R[1:]) if len(R) > 1 else set()
            if op in ("v_add_co_u32", "v_addc_co_u32", "v_sub_co_u32"): self.w = R[0] | R[1]; self.r = set().union(*R[2:])
            if op.startswith("v_fmac") or op.startswith("v_dot2c") or self.dpp: self.r |= R[0]
            if op == "v_cndmask_b32" and len(ops) == 3: self.r |= {("s", "vcc")}
        elif op.startswith("ds_read") or op.startswith("ds_bpermute") or op.startswith("ds_swizzle"):
            self.kind = "ds"; self.w = R[0]; self.r = set().union(*R[1:])
        elif op.startswith("ds_write") or op.startswith("ds_add"):
            self.kind = "ds"; self.r = set().union(*R)
        elif op.startswith("buffer_load") or op.startswith("global_load"):
            self.kind = "vmem"
            if " lds" in " " + self.mods or "_lds_" in op:
                self.r = set().union(*R) | {("s", "m0")}; self.dma = True
            else:
                self.w = R[0]; self.r = set().union(*R[1:])
                if "d16" in op: self.r |= R[0]
        elif op.startswith("buffer_store") or op.startswith("global_store") or op.startswith("buffer_atomic") or op.startswith("global_atomic"):
            self.kind = "vmem"; self.r = set().union(*R)
            self.wide = op.endswith("x4") or op.endswith("x3")
            self.data = R[0] if op.startswith("buffer") else R[1]
        elif op.startswith("s_"):
            self.kind = "salu"
            if op.startswith("s_cmp") or op.startswith("s_bitcmp") or op in ("s_waitcnt", "s_barrier", "s_nop", "s_endpgm", "s_setprio", "s_sleep") or op.startswith("s_cbranch") or op == "s_branch":
                self.r = set().union(*R) if R else set()
            else:
                self.w = R[0] if R else set(); self.r = set().union(*R[1:]) if len(R) > 1 else set()
                if "saveexec" in op: self.w |= {("s", "exec")}
        self.states = 1
        if op == "s_nop": self.states = int(ops[0], 0) + 1
def need(p, c):
    n = 0
    pv = p.kind in ("valu", "trans"); cv = c.kind in ("valu", "trans")
    vw = {x for x in p.w if x[0] in "va"}; sw = {x for x in p.w if x[0] == "s"}
    if pv:
        if c.kind == "mfma" and vw & c.r: n = max(n, 2)
        if cv and c.dpp and vw & c.r: n = max(n, 2)
        if c.base.startswith("v_permlane") and vw & c.r: n = max(n, 2)
        if c.base in ("v_readfirstlane_b32", "v_readlane_b32") and vw & c.r: n = max(n, 1)
        if p.kind == "trans" and (c.kind in ("valu", "mfma")) and vw & c.r: n = max(n, 1)
        if sw:
            if c.kind == "vmem" and sw & c.r: n = max(n, 5)
            if cv and sw & c.r: n = max(n, 2)
            if c.base in ("v_readlane_b32", "v_writelane_b32") and sw & c.r: n = max(n, 4)
            if c.kind == "salu" and sw & c.r: n = max(n, 1)
    if p.kind == "mfma":
        long = {4: 8, 8: 12}[p.passes]
        if c.kind == "mfma":
            if p.w & c.srcAB: n = max(n, long)
            if p.w & c.srcC and not (p.w == c.srcC and p.passes == c.passes): n = max(n, {4: 6, 8: 10}[p.passes])
            if p.w & c.w and not (p.w == c.srcC and p.passes == c.passes) : n = max(n, {4: 6, 8: 10}[p.passes])
        elif cv or c.kind in ("ds", "vmem"):
            if p.w & (c.r | c.w): n = max(n, long)
            if p.srcC & c.w: n = max(n, {4: 3, 8: 7}[p.passes])
    if p.kind == "salu" and ("s", "m0") in p.w and getattr(c, "dma", False): n = max(n, 1)
    if p.kind == "salu" and ("s", "exec") in p.w and cv and c.dpp: n = max(n, 1)
    if p.kind == "vmem" and getattr(p, "wide", False) and p.data & c.w: n = max(n, 2)
    if p.kind == "ds" and p.base.startswith("ds_write") and False: pass
    return n
PAGE_FILL = 3880
class Asm:
    def __init__(self):
        self.lines = []; self.hist = []; self.pads = 0
    def raw(self, s): self.lines.append(s)
    def label(self, s):
        self.lines.append(s + ":")
    def __call__(self, text):
        ins = Ins(text)
        dist = 0; pad = 0
        for p in reversed(self.hist[-24:]):
            pad = max(pad, need(p, ins) - dist)
            dist += p.states
            if dist >= 20: break
        if pad > 0:
            self.pads += pad
            nop = Ins(f"s_nop {pad-1}"); self.hist.append(nop); self.lines.append("    " + nop.text)
        self.hist.append(ins); self.lines.append("    " + text)
        if getattr(self, "pad_on", False):
            self.pad_bytes += (4 if ins.op in ("s_waitcnt", "s_barrier", "v_exp_f32", "v_rcp_f32") else 8) + (4 if pad > 0 else 0)
            if ins.kind == "mfma" and self.pad_bytes > PAGE_FILL: self.page_pad()
    def page_pads(self, prefix):
        self.pad_prefix = prefix; self.pad_n = 0; self.pad_on = True; self.page_pad()
    def page_pad(self):
        k = self.pad_n; self.pad_n += 1; self.pad_bytes = 4; p = self.pad_prefix
        self.lines += [f"    s_branch {p}_skip{k}", ".p2align 12", f"{p}_pad{k}:", f"    s_branch {p}_ret{k}", "    s_nop 0", f"{p}_skip{k}:"]
        self.hist.append(Ins("s_nop 0"))
    def fence(self):
        self("s_nop 15")
    def text(self): return "\n".join(self.lines) + "\n"
def v(b, n=1): return f"v{b}" if n == 1 else f"v[{b}:{b+n-1}]"
def a(b, n=1): return f"a{b}" if n == 1 else f"a[{b}:{b+n-1}]"
def s(b, n=1): return f"s{b}" if n == 1 else f"s[{b}:{b+n-1}]"
import struct
def f32(x): return "0x%08x" % struct.unpack("<I", struct.pack("<f", x))[0]
def kernel_head(A, name):
    A.raw(".text"); A.raw(f".globl {name}"); A.raw(".p2align 8"); A.raw(f".type {name},@function"); A.raw(f"{name}:")
    A.hist = []
def kernel_desc(A, name, vgpr, accum, sgpr=102):
    A.raw('.section .rodata,"a"'); A.raw(".p2align 6"); A.raw(f".amdhsa_kernel {name}")
    A.raw(f"  .amdhsa_next_free_vgpr {vgpr}"); A.raw(f"  .amdhsa_next_free_sgpr {sgpr}"); A.raw(f"  .amdhsa_accum_offset {accum}")
    A.raw("  .amdhsa_group_segment_fixed_size 0"); A.raw("  .amdhsa_kernarg_size 80"); A.raw("  .amdhsa_user_sgpr_count 2")
    A.raw("  .amdhsa_user_sgpr_kernarg_segment_ptr 1"); A.raw("  .amdhsa_system_sgpr_workgroup_id_x 1")
    A.raw("  .amdhsa_float_denorm_mode_32 3")
    A.raw(".end_amdhsa_kernel")
def srd(A, d, base, size):
    A(f"s_mov_b32 s{d}, s{base}"); A(f"s_mov_b32 s{d+1}, s{base+1}"); A(f"s_mov_b32 s{d+2}, {size}"); A(f"s_mov_b32 s{d+3}, 0x20000")
```

```python
from asmlib import *
import gen as G
from gen import M32, f32, emit_pi, emit_kap2, CH, mark

class Cfg0:
    pf_w2 = False
    pf_code = True
    pf_w1 = False
    pf_x = False
    xw = True; xw_wait = 0; xw_bar = 7; copy = ''; xw_n = 14
    ntw = ''; ntW = 'nt'; ntx = ''
    pregen = 0
    hlate = False
    endpf = False
    tag = 'k0'
    w1cols = 9
    hx = False
    latepf = True
    nojob = False

def frag_ops(dst_c, dst_s, consts, vfreq, vbase, t, negsin):
    L = []
    for j, c in enumerate(consts):
        L.append(f"v_mov_b32 v{t+j}, v{vbase}" if c == 0 else f"v_fmamk_f32 v{t+j}, v{vfreq}, {f32(c)}, v{vbase}")
    for j in range(8):
        L.append(f"v_cos_f32 v{t+8+j}, v{t+j}")
        L.append(f"v_sin_f32_e64 v{t+16+j}, -v{t+j}" if negsin else f"v_sin_f32 v{t+16+j}, v{t+j}")
    for j in range(4):
        L.append(f"v_cvt_pk_bf16_f32 v{dst_c+j}, v{t+8+2*j}, v{t+9+2*j}")
        L.append(f"v_cvt_pk_bf16_f32 v{dst_s+j}, v{t+16+2*j}, v{t+17+2*j}")
    return L

def k0(A, cfg=Cfg0):
    name = "pre_kernel"
    kernel_head(A, name)
    A("s_cmp_ge_u32 s2, 256"); A("s_cbranch_scc1 L0_end")
    G.stamp_begin(A)
    A("s_load_dwordx4 s[4:7], s[0:1], 0")
    A("s_load_dwordx2 s[24:25], s[0:1], 16")
    A("s_load_dwordx2 s[26:27], s[0:1], 72")
    A("s_load_dwordx2 s[28:29], s[0:1], 32")
    A("s_load_dwordx2 s[30:31], s[0:1], 48")
    npf = 0
    if cfg.pf_code:
        A("s_getpc_b64 s[50:51]"); A.label("L0_pc")
        A("s_lshr_b32 s40, s2, 3"); A("s_lshl_b32 s40, s40, 7")
        A("v_lshlrev_b32 v1, 12, v0"); A("v_add_u32 v1, s40, v1"); A("v_min_u32 v1, L_text_end-L0_pc-4, v1")
        A("v_cmp_gt_u32 vcc, 16, v0"); A("s_and_saveexec_b64 s[52:53], vcc"); A("s_cbranch_execz L0_nc")
        A("global_load_dword v252, v1, s[50:51]")
        A.label("L0_nc")
        A("s_mov_b64 exec, s[52:53]")
    A("v_lshrrev_b32 v4, 6, v0"); A("v_readfirstlane_b32 s19, v4")
    A("v_and_b32 v5, 31, v0"); A("v_bfe_u32 v6, v0, 5, 1")
    if cfg.xw:
        A("s_cmp_ge_u32 s19, 4"); A("s_cbranch_scc1 L0_pfw")
    A("s_lshr_b32 s40, s2, 3"); A("s_mul_i32 s43, s40, 162"); A("v_min_u32 v12, 161, v0"); A("v_add_u32 v248, s43, v12"); A("v_lshlrev_b32 v248, 7, v248")
    A(f"v_min_u32 v12, {18*cfg.w1cols-1}, v0")
    A(f"v_mul_u32_u24 v13, {(1 << 16) // 18 + 1}, v12"); A("v_lshrrev_b32 v13, 16, v13")
    A("v_mul_u32_u24 v14, 18, v13"); A("v_sub_u32 v12, v12, v14"); A("s_mul_i32 s43, s40, 18"); A("v_add_u32 v12, s43, v12")
    A("v_and_b32 v14, 1, v13"); A("v_lshrrev_b32 v13, 1, v13"); A("v_sub_u32 v15, 8, v13"); A("v_cmp_eq_u32 vcc, 1, v14"); A("v_cndmask_b32 v13, v13, v15, vcc")
    A("v_mul_u32_u24 v249, 9216, v12"); A("v_lshl_add_u32 v249, v13, 7, v249")
    A("s_and_b32 s40, s2, 7"); A("s_mul_i32 s41, s40, 1152"); A(f"s_mul_i32 s42, s40, {576*1152}"); A("s_xor_b32 s40, s40, 1"); A("s_mul_i32 s61, s40, 1152")
    A("s_lshr_b32 s43, s2, 3"); A("s_mul_i32 s43, s43, 18"); A("v_min_u32 v12, 35, v0"); A("v_lshrrev_b32 v13, 1, v12"); A("v_add_u32 v13, s43, v13")
    A("v_mul_u32_u24 v251, 9216, v13"); A("v_and_b32 v12, 1, v12"); A("v_lshl_add_u32 v251, v12, 10, v251")
    A("s_cmp_ge_u32 s2, 192"); A("s_cbranch_scc1 L0_helper")
    A("s_and_b32 s16, s2, 63"); A("s_lshr_b32 s17, s2, 6")
    A("v_lshrrev_b32 v1, 3, v0"); A("v_and_b32 v2, 7, v0")
    A("v_mul_u32_u24 v3, 73728, v1"); A("v_lshl_add_u32 v3, v2, 4, v3")
    A("s_mul_i32 s18, s16, 1152")
    X, Fx, T = 16, 52, 124
    FB = 148
    MR, MI, MN = 220, 228, 236
    emit_pi(A, 8, 5, 9); emit_kap2(A, 7, 8, 9)
    A("s_mul_i32 s20, s17, 3"); A("s_add_u32 s20, s20, s19")
    A("s_lshl_b32 s21, s20, 5"); A("v_add_u32 v7, s21, v7")
    A("v_cmp_eq_u32 s[44:45], 0, v7")
    A("v_and_b32 v8, 1, v7"); A("v_cmp_eq_u32 s[46:47], 1, v8")
    A("v_lshlrev_b32 v8, 31, v8"); A("v_or_b32 v10, 1.0, v8")
    A("v_bfe_u32 v8, v7, 1, 1"); A("v_mul_u32_u24 v8, 0x8000, v8"); A("v_lshl_add_u32 v244, v8, 16, v8")
    A("v_add_u32 v8, 1, v7"); A("v_bfe_u32 v8, v8, 1, 1"); A("v_mul_u32_u24 v8, 0x8000, v8"); A("v_lshl_add_u32 v245, v8, 16, v8")
    A("v_cvt_f32_u32 v7, v7"); A(f"v_mul_f32 v7, {f32(1.0/576)}, v7")
    A("v_cvt_f32_u32 v8, v6"); A("v_mul_f32 v8, 0x41000000, v8"); A("v_mul_f32 v8, v8, v7")
    GS = [Fx, Fx + 16]
    def pack(kk):
        g = GS[kk & 1]
        for j in range(8): A(f"v_cvt_pk_bf16_f32 v{FB+8*kk+j}, v{g+2*j}, v{g+2*j+1}")
    def gen(kk):
        g = GS[kk & 1]
        if kk < 2:
            for j in range(8):
                c = 16*kk + j
                A(f"v_mov_b32 v{T+j}, v8" if c == 0 else f"v_fmamk_f32 v{T+j}, v7, {f32(c)}, v8")
            for j in range(8):
                A(f"v_cos_f32 v{g+j}, v{T+j}"); A(f"v_sin_f32_e64 v{g+8+j}, -v{T+j}")
            for j in range(8): A(f"v_cndmask_b32 v{g+8+j}, v{g+8+j}, {'-1.0' if j & 1 else '1.0'}, s[44:45]")
        else:
            o = GS[(kk + 1) & 1]
            for j in range(0, 16, 2): A(f"v_pk_fma_f32 {v(g+j,2)}, {v(o+j,2)}, v[246:247], {v(g+j,2)} neg_lo:[0,0,1] neg_hi:[0,0,1]")
        pack(kk)
    A("v_mul_f32 v246, 0x41800000, v7"); A("v_cos_f32 v246, v246"); A("v_add_f32 v246, v246, v246"); A("v_mov_b32 v247, v246")
    for kk in range(cfg.pregen): gen(kk)
    A("s_waitcnt lgkmcnt(0)")
    mark(A, 7)
    srd(A, 8, 4, G.XB); srd(A, 12, 26, G.WS_SIZE)
    for i in range(9):
        A(f"buffer_load_dwordx4 {v(X+4*i,4)}, v3, s[8:11], s18 offen offset:{128*i} {cfg.ntx}")
    def wpf():
        srd(A, 32, 28, G.W1B); srd(A, 36, 30, G.W1B)
        if cfg.pf_w1: A(f"buffer_load_dword v254, v249, s[32:35], s41 offen {cfg.ntw}")
        if cfg.pf_x: A(f"buffer_load_dword v253, v251, s[32:35], s61 offen {cfg.ntw}")
        if cfg.pf_w2: A(f"buffer_load_dword v255, v248, s[36:39], s42 offen {cfg.ntw}")
    if not cfg.latepf:
        wpf(); npf = int(cfg.pf_w1) + int(cfg.pf_w2) + int(cfg.pf_x)
    A("s_cmp_eq_u32 s19, 3"); A("s_cbranch_scc1 L0_ln")
    for kk in range(cfg.pregen, 9): gen(kk)
    mset = ["v_cvt_f32_u32 v7, v5", f"v_mul_f32 v7, {f32(1.0/32)}, v7", "v_lshlrev_b32 v8, 8, v6", "v_add_u32 v8, s16, v8", "v_cvt_f32_u32 v8, v8",
            f"v_mul_f32 v8, {f32(1.0/64)}, v8", "v_mul_f32 v8, v8, v7"]
    for ks in range(2): mset += frag_ops(MR+4*ks, MI+4*ks, [16*ks + c for c in CH], 7, 8, T, True)
    mset += [f"v_xor_b32 v{MN+i}, 0x80008000, v{MI+i}" for i in range(8)]
    for x in mset: A(x)
    A.label("L0_ln")
    mark(A, 1)
    A("v_mov_b32 v12, 0"); A("v_mov_b32 v13, 0"); A("v_mov_b32 v14, 0"); A("v_mov_b32 v15, 0")
    for i in range(9):
        A(f"s_waitcnt vmcnt({8-i+npf})")
        if i == 8:
            mark(A, 2)
            if cfg.latepf: wpf()
        for q in range(4):
            w = X + 4*i + q; f = Fx + 2*(4*i+q)
            A(f"v_lshlrev_b32 v{f}, 16, v{w}"); A(f"v_and_b32 v{f+1}, 0xffff0000, v{w}")
        for q in range(4):
            f = Fx + 2*(4*i+q); acc = 12 + 2*(q & 1)
            A(f"v_pk_add_f32 {v(acc,2)}, {v(acc,2)}, {v(f,2)}")
    def red8(r):
        for m in ("quad_perm:[1,0,3,2]", "quad_perm:[2,3,0,1]", "row_half_mirror"):
            A(f"v_add_f32_dpp v{r}, v{r}, v{r} {m} row_mask:0xf bank_mask:0xf")
    A("v_pk_add_f32 v[12:13], v[12:13], v[14:15]"); A("v_add_f32 v12, v12, v13")
    red8(12)
    A(f"v_mul_f32 v12, {f32(1.0/576)}, v12")
    A("v_cvt_pk_bf16_f32 v14, v12, v12"); A("v_lshlrev_b32 v14, 16, v14"); A("v_mov_b32 v15, v14")
    A("v_sub_f32 v11, v12, v14")
    for r in range(T, T+4): A(f"v_mov_b32 v{r}, 0")
    for i in range(36):
        f = Fx + 2*i
        A(f"v_pk_add_f32 {v(f,2)}, {v(f,2)}, v[14:15] neg_lo:[0,1] neg_hi:[0,1]")
    for i in range(36):
        f = Fx + 2*i; acc = T + 2*(i & 1)
        A(f"v_pk_fma_f32 {v(acc,2)}, {v(f,2)}, {v(f,2)}, {v(acc,2)}")
    A(f"v_pk_add_f32 v[12:13], {v(T,2)}, {v(T+2,2)}"); A("v_add_f32 v12, v12, v13")
    red8(12)
    rnd = ["v_cvt_pk_bf16_f32 v12, v12, v12", "v_lshlrev_b32 v12, 16, v12"]
    chain = [f"v_mul_f32 v12, {f32(1.0/576)}, v12", "v_fma_f32 v12, -v11, v11, v12", "v_max_f32 v12, 0, v12"] + rnd + [f"v_add_f32 v12, {f32(1e-5)}, v12"] + rnd
    chain += ["v_sqrt_f32 v12, v12"] + rnd + ["v_rcp_f32 v12, v12", "v_mov_b32 v13, v12", f"v_mul_f32 v14, {f32(G.LOG2E)}, v12", "v_mov_b32 v15, v14"]
    for x in chain: A(x)
    A("v_mul_u32_u24 v11, 528, v2"); A("v_lshl_add_u32 v11, v1, 4, v11")
    for i in range(9):
        for q in range(4):
            f = Fx + 2*(4*i+q)
            A(f"v_pk_mul_f32 {v(T+2*q,2)}, {v(f,2)}, v[12:13]")
        for q in range(4):
            A(f"v_cvt_pk_bf16_f32 v{X+4*i+q}, v{T+2*q}, v{T+2*q+1}")
        A(f"ds_write_b128 v11, {v(X+4*i,4)} offset:{8*528*i}")
    A("v_lshlrev_b32 v9, 9, v2"); A("v_lshl_add_u32 v9, v1, 4, v9")
    A("s_mul_i32 s22, s16, 36864"); A("s_mul_i32 s23, s17, 12288"); A("s_add_u32 s22, s22, s23")
    if G.XS_OFF: A(f"s_add_u32 s22, s22, {G.XS_OFF}")
    for t in range(3):
        if t < 2:
            A(f"s_cmp_lg_u32 s17, {t}"); A(f"s_cbranch_scc1 L0_xs{t+1}")
        for ii in range(3):
            i = 3*t + ii
            for q in range(4):
                f = Fx + 2*(4*i+q)
                A(f"v_pk_mul_f32 {v(f,2)}, {v(f,2)}, v[14:15]")
            for q in range(4):
                f = Fx + 2*(4*i+q)
                A(f"v_cvt_pk_bf16_f32 v{T+8+4*ii+q}, v{f}, v{f+1}")
            A(f"buffer_store_dwordx4 {v(T+8+4*ii,4)}, v9, s[12:15], s22 offen sc1")
            if ii < 2: A("s_add_u32 s22, s22, 4096")
        if t < 2:
            A("s_branch L0_xsd"); A.label(f"L0_xs{t+1}")
    A.label("L0_xsd")
    mark(A, 3)
    A("s_waitcnt lgkmcnt(0)"); A("s_barrier")
    mark(A, 4)
    A("s_cmp_eq_u32 s19, 3"); A("s_cbranch_scc1 L0_fin")
    A("v_mul_u32_u24 v11, 528, v6"); A("v_lshl_add_u32 v11, v5, 4, v11")
    R1, I1, R2, I2 = 52, 68, 84, 100
    AF = 16; DV = 116
    DVS = [116, 140]
    TG = 124
    order = []
    for kk in range(9): order += [kk, kk + 18, kk + 9, kk + 27]
    def derive(kk):
        d = DV0 + 8 * (kk & 1); r = FB + 8*kk; L = []
        for j in range(4):
            L.append(f"v_cndmask_b32 v{d+j}, v{r+j}, v{r+4+j}, s[46:47]"); L.append(f"v_cndmask_b32 v{d+4+j}, v{r+4+j}, v{r+j}, s[46:47]")
        for j in range(4):
            L.append(f"v_xor_b32 v{d+j}, v244, v{d+j}"); L.append(f"v_xor_b32 v{d+4+j}, v245, v{d+4+j}")
        return L
    DV0 = 108 + 8
    for n in range(6): A(f"ds_read_b128 {v(AF+4*n,4)}, v11 offset:{1056*order[n]}")
    fill = derive(0)
    late = []
    for n, kk in enumerate(order):
        if n + 6 < 36: A(f"ds_read_b128 {v(AF+4*((n+6)%8),4)}, v11 offset:{1056*order[n+6]}")
        A(f"s_waitcnt lgkmcnt({min(6, 35-n)})")
        accr, acci = (R1, I1) if kk < 18 else (R2, I2)
        kb = n // 4
        fb = FB + 8*kb if n % 4 < 2 else DV0 + 8*(kb & 1)
        if n % 4 == 2:
            assert not fill
            if kb + 1 < 9: fill = derive(kb + 1)
        for part, acc in enumerate((accr, acci)):
            A(f"{M32} {v(acc,16)}, {v(AF+4*(n%8),4)}, {v(fb+4*part,4)}, {'0' if n < 2 else v(acc,16)}")
            k = 4 if n < 2 else 2
            for _ in range(k):
                if fill: A(fill.pop(0))
            if n >= 12:
                for _ in range(2):
                    if late: A(late.pop(0))
    assert not late and not fill
    mark(A, 5)
    ZR, ZI = 16, 24
    for i in range(16): A(f"v_fmac_f32 v{R1+i}, v10, v{R2+i}")
    for i in range(8): A(f"v_cvt_pk_bf16_f32 v{ZR+i}, v{R1+2*i}, v{R1+2*i+1}")
    AR, AI, TR, TI = 148, 164, 180, 196
    zi = [f"v_fmac_f32 v{I1+i}, v10, v{I2+i}" for i in range(16)] + [f"v_cvt_pk_bf16_f32 v{ZI+i}, v{I1+2*i}, v{I1+2*i+1}" for i in range(8)]
    for x in (f"{M32} {v(AR,16)}, {v(ZR,4)}, {v(MR,4)}, 0", f"{M32} {v(AI,16)}, {v(ZR,4)}, {v(MI,4)}, 0",
              f"{M32} {v(AR,16)}, {v(ZR+4,4)}, {v(MR+4,4)}, {v(AR,16)}", f"{M32} {v(AI,16)}, {v(ZR+4,4)}, {v(MI+4,4)}, {v(AI,16)}"):
        A(x)
        for _ in range(6): A(zi.pop(0))
    A(f"{M32} {v(TR,16)}, {v(ZI,4)}, {v(MN,4)}, {v(AR,16)}"); A(f"{M32} {v(TR,16)}, {v(ZI+4,4)}, {v(MN+4,4)}, {v(TR,16)}")
    A(f"{M32} {v(TI,16)}, {v(ZI,4)}, {v(MR,4)}, {v(AI,16)}"); A(f"{M32} {v(TI,16)}, {v(ZI+4,4)}, {v(MR+4,4)}, {v(TI,16)}")
    A("s_mul_i32 s23, s19, 4608"); A("s_add_u32 s23, s23, 38016")
    A("v_mul_u32_u24 v11, 144, v5"); A("v_lshl_add_u32 v11, v6, 5, v11"); A("v_add_u32 v11, s23, v11")
    A("v_bfe_u32 v1, v0, 3, 3"); A("v_mul_u32_u24 v3, 144, v1"); A("v_lshl_add_u32 v3, v2, 4, v3"); A("v_add_u32 v3, s23, v3")
    A("v_mul_u32_u24 v9, 73728, v1"); A("v_lshl_add_u32 v9, v2, 4, v9")
    A("s_lshl_b32 s22, s20, 7"); A("s_add_u32 s22, s22, s18"); A(f"s_add_u32 s22, s22, {G.TP_OFF}")
    A("s_cmp_lg_u32 s20, 0"); A("s_cbranch_scc1 L0_nonyq")
    A("s_mov_b32 exec_hi, 0")
    A(f"v_sub_f32 v7, v{TI}, v{AI}"); A(f"v_sub_f32 v8, v{AR}, v{TR}")
    A(f"v_mov_b32 v{TR}, v{AR}"); A(f"v_mov_b32 v{TI}, v{AI}")
    A("v_cvt_pk_bf16_f32 v7, v7, v8"); A("v_lshlrev_b32 v8, 1, v5")
    A("s_lshl_b32 s23, s16, 7"); A(f"s_add_u32 s23, s23, {G.TN_OFF}")
    A("buffer_store_short v7, v8, s[12:15], s23 offen sc1"); A("buffer_store_short_d16_hi v7, v8, s[12:15], s23 offen offset:64 sc1")
    A("s_mov_b32 exec_hi, -1")
    A.label("L0_nonyq")
    for part, b in enumerate((TR, TI)):
        for i in range(8): A(f"v_cvt_pk_bf16_f32 v{16+8*part+i}, v{b+2*i}, v{b+2*i+1}")
        A(f"ds_write_b128 v11, {v(16+8*part,4)} offset:{64*part}"); A(f"ds_write_b128 v11, {v(20+8*part,4)} offset:{64*part+16}")
    A("s_waitcnt lgkmcnt(0)")
    for i in range(4): A(f"ds_read_b128 {v(32+4*i,4)}, v3 offset:{8*144*i}")
    for i in range(4):
        A(f"s_waitcnt lgkmcnt({3-i})")
        A(f"buffer_store_dwordx4 {v(32+4*i,4)}, v9, s[12:15], s22 offen sc1")
        if i < 3: A(f"s_add_u32 s22, s22, {8*73728}")
    mark(A, 6)
    A("s_branch L0_fin")
    A.label("L0_helper"); A.hist = []
    A("s_sub_u32 s48, s2, 192"); A("s_lshr_b32 s49, s48, 1"); A("s_and_b32 s48, s48, 1")
    A("s_mul_i32 s52, s49, 578"); A("s_and_b32 s53, s52, 15"); A("s_sub_u32 s52, s52, s53")
    A(f"s_mul_i32 s54, s48, {32*18496}"); A("s_add_u32 s52, s52, s54")
    for n in range(5):
        A(f"v_add_u32 v1, {256*n}, v0"); A(f"v_mul_u32_u24 v2, {(1 << 18) // 37 + 1}, v1"); A("v_lshrrev_b32 v2, 18, v2")
        A(f"v_mul_u32_u24 v2, {18496 - 592}, v2"); A(f"v_lshl_add_u32 v{16+n}, v1, 4, v2")
    A("s_lshl_b32 s54, s19, 10")
    A("s_waitcnt lgkmcnt(0)")
    srd(A, 12, 26, G.WS_SIZE)
    if cfg.hx:
        srd(A, 8, 4, G.XB)
        A("s_and_b32 s16, s2, 63"); A("s_mul_i32 s18, s16, 1152")
        A("v_lshrrev_b32 v1, 3, v0"); A("v_and_b32 v2, 7, v0"); A("v_mul_u32_u24 v3, 73728, v1"); A("v_lshl_add_u32 v3, v2, 7, v3")
        A(f"buffer_load_dword v250, v3, s[8:11], s18 offen offset:128 {cfg.ntx}")
        A("s_waitcnt vmcnt(0)")
    srd(A, 8, 6, G.WB); srd(A, 20, 24, G.WB)
    for n in range(5):
        for arr in range(2):
            A(f"s_add_u32 m0, s54, {20480*arr + 4096*n}")
            A(f"buffer_load_dwordx4 v{16+n}, s[{8+12*arr}:{11+12*arr}], s52 offen {cfg.ntW} lds")
    wpf()
    A("v_bfe_u32 v1, v0, 4, 2"); A(f"v_mul_u32_u24 v1, {4*592}, v1"); A("v_and_b32 v2, 15, v0"); A("v_lshl_add_u32 v1, v2, 2, v1")
    A("s_and_b32 s55, s19, 1"); A(f"s_mul_i32 s56, s55, {16*592}"); A("s_lshr_b32 s57, s19, 1"); A("s_lshl_b32 s58, s57, 6")
    A("s_add_u32 s56, s56, s58"); A("s_and_b32 s58, s53, 12"); A("s_add_u32 s56, s56, s58"); A("v_add_u32 v1, s56, v1")
    A("s_and_b32 s58, s53, 2"); A("s_lshl_b32 s58, s58, 1"); A("v_add_u32 v5, s58, v1")
    A("s_mul_i32 s58, s49, 9"); A("s_add_u32 s58, s58, s57"); A("s_lshl_b32 s58, s58, 13"); A("s_lshl_b32 s59, s48, 1"); A("s_add_u32 s59, s59, s55")
    A("s_lshl_b32 s59, s59, 10"); A("s_add_u32 s58, s58, s59"); A(f"s_add_u32 s58, s58, {G.WT_OFF}")
    A("v_and_b32 v2, 63, v0"); A("v_lshlrev_b32 v2, 4, v2"); A("v_add_u32 v3, 4096, v2")
    A("s_mov_b32 s59, 0x05040100"); A("s_mov_b32 s60, 0x07060302"); A("s_bitcmp1_b32 s53, 1")
    A("s_cselect_b32 s55, s60, s59"); A("s_cselect_b32 s56, s59, s60")
    A(f"s_waitcnt vmcnt({int(cfg.pf_w1) + int(cfg.pf_w2) + int(cfg.pf_x)})"); A("s_barrier")
    mark(A, 2)
    def unit(i, e):
        b = 24 + 16*i + 8*e
        for j in range(4):
            A(f"ds_read_b32 v{b+j}, v{5 if e else 1} offset:{592*j + 128*i}"); A(f"ds_read_b32 v{b+4+j}, v{5 if e else 1} offset:{20480 + 592*j + 128*i}")
    def out(i, e):
        b = 24 + 16*i + 8*e; o = 104 + 8*i + 4*e
        for j in range(4): A(f"v_perm_b32 v{o+j}, v{b+4+j}, v{b+j}, s{55+e}")
        A(f"buffer_store_dwordx4 {v(o,4)}, v{2+e}, s[12:15], s58 offen sc1")
        if e: A("s_add_u32 s58, s58, 16384")
    unit(0, 0)
    for n in range(8):
        unit((n + 1) // 2, (n + 1) % 2); A("s_waitcnt lgkmcnt(8)"); out(n // 2, n % 2)
    unit(4, 1)
    A("s_waitcnt lgkmcnt(0)")
    A("s_cmp_ge_u32 s19, 2"); A("s_cbranch_scc1 L0_h2")
    out(4, 0); out(4, 1)
    A("s_branch L0_fin")
    A.label("L0_h2")
    A("s_cmp_lg_u32 s19, 3"); A("s_cbranch_scc1 L0_fin")
    A("s_mov_b32 exec_hi, 0")
    A("v_and_b32 v1, 31, v0"); A("v_mul_u32_u24 v2, 592, v1"); A("v_add_u32 v2, s53, v2")
    A("ds_read_u16 v16, v2 offset:576"); A(f"ds_read_u16 v17, v2 offset:{20480+576}")
    A("v_lshrrev_b32 v3, 2, v1"); A("v_lshlrev_b32 v3, 8, v3"); A("v_and_b32 v4, 3, v1"); A("v_lshl_add_u32 v3, v4, 2, v3")
    A("s_lshr_b32 s57, s49, 4"); A("s_lshl_b32 s57, s57, 12"); A("s_and_b32 s58, s49, 15"); A("s_lshl_b32 s58, s58, 4"); A("s_add_u32 s57, s57, s58")
    A("s_lshl_b32 s58, s48, 11"); A("s_add_u32 s57, s57, s58"); A(f"s_add_u32 s57, s57, {G.WT_OFF + 288*8192}")
    A("s_waitcnt lgkmcnt(0)")
    A("v_lshl_or_b32 v16, v17, 16, v16")
    A("buffer_store_dword v16, v3, s[12:15], s57 offen sc1")
    A.label("L0_fin"); A.hist = []
    A("s_cmp_lg_u32 s19, 3"); A("s_cbranch_scc1 L0_fin2")
    A("s_mov_b64 exec, -1")
    A("v_and_b32 v1, 63, v0"); A("v_lshlrev_b32 v1, 4, v1"); A("s_lshl_b32 s22, s2, 10"); A(f"s_add_u32 s22, s22, {G.FLG_OFF}")
    for i in range(4): A(f"v_mov_b32 v{240+i}, 0")
    A("buffer_store_dwordx4 v[240:243], v1, s[12:15], s22 offen sc1")
    A.label("L0_fin2")
    G.stamp_end(A, 0, 26, cfg.tag)
    if cfg.endpf:
        A("s_mov_b64 exec, -1")
        srd(A, 36, 30, G.W1B)
        A(f"buffer_load_dword v255, v248, s[36:39], s42 offen {cfg.ntw}")
    A.label("L0_end"); A("s_endpgm")
    if cfg.xw:
        A.label("L0_pfw"); A.hist = []
        A("s_cmp_ge_u32 s2, 192"); A("s_cbranch_scc1 L0_end")
        A("v_and_b32 v1, 255, v0")
        for i in range(7):
            A(f"v_add_u32 v2, {256*i}, v1")
            if i == 6: A("v_min_u32 v2, 1727, v2")
            A(f"v_mul_u32_u24 v3, {(1<<20)//72+1}, v2"); A("v_lshrrev_b32 v3, 20, v3")
            A(f"v_mul_u32_u24 v3, {9216-1152}, v3"); A(f"v_lshlrev_b32 v{24+i}, 4, v2"); A(f"v_add_u32 v{16+i}, v3, v{24+i}")
        A("s_and_b32 s16, s2, 7"); A("s_lshr_b32 s17, s2, 3")
        A("s_mul_i32 s18, s16, 1152"); A(f"s_mul_i32 s20, s17, {24*9216}"); A("s_add_u32 s18, s18, s20")
        A(f"s_mul_i32 s20, s16, {576*1152}"); A(f"s_mul_i32 s21, s17, {24*1152}"); A("s_add_u32 s20, s20, s21")
        A(f"s_mov_b32 m0, {38016 + 3*4608}")
        A("s_waitcnt lgkmcnt(0)")
        srd(A, 32, 28, G.W1B); srd(A, 36, 30, G.W1B)
        if cfg.xw_wait == 1:
            srd(A, 8, 4, G.XB)
            A("s_and_b32 s22, s2, 63"); A("s_mul_i32 s22, s22, 1152"); A("v_lshrrev_b32 v2, 3, v1"); A("v_mul_u32_u24 v2, 73728, v2")
            A("buffer_load_dword v40, v2, s[8:11], s22 offen offset:1024"); A("s_waitcnt vmcnt(0)")
        n = 0
        for arr, (vb, sr, so) in enumerate(((16, 32, 18), (24, 36, 20))):
            for i in range(7):
                if n == cfg.xw_bar: A("s_barrier")
                if n >= cfg.xw_n: continue
                if cfg.copy: A(f"buffer_load_dwordx4 {v(64+4*n,4)}, v{vb+i}, s[{sr}:{sr+3}], s{so} offen nt")
                else: A(f"buffer_load_dwordx4 v{vb+i}, s[{sr}:{sr+3}], s{so} offen {cfg.ntw} lds")
                n += 1
        if cfg.copy:
            srd(A, 12, 26, G.WS_SIZE)
            A(f"s_mul_i32 s22, s2, {14*4096}"); A(f"s_add_u32 s22, s22, {G.ACT_OFF}")
            for i in range(14):
                A(f"s_waitcnt vmcnt(13)"); A(f"buffer_store_dwordx4 {v(64+4*i,4)}, v24, s[12:15], s22 offen {cfg.copy}"); A("s_add_u32 s22, s22, 4096")
        A("s_branch L0_fin2")
    return (name, (256, 512 if cfg.xw else 256, 38016 + 3*4608 + 1024), 256, 256)
```

```python
from asmlib import *
import gen as G
from gen import M32, f32, gen_frag, emit_pi, CH
BAR_AT = 3; XT = 5; PS1 = 3; PRIO = True; OUTFL = ""; SFIRST = False; B0 = 2

def k2(A, NP=8):
    name = "fin_kernel"
    kernel_head(A, name)
    A("s_cmp_ge_u32 s2, 192"); A("s_cbranch_scc1 L3_end")
    G.stamp_begin(A)
    A("s_load_dwordx2 s[4:5], s[0:1], 0"); A("s_load_dwordx2 s[6:7], s[0:1], 56"); A("s_load_dwordx2 s[26:27], s[0:1], 72")
    A("v_lshrrev_b32 v4, 6, v0"); A("v_readfirstlane_b32 s43, v4")
    A("s_and_b32 s29, s2, 63"); A("s_lshr_b32 s30, s2, 6")
    A("s_cmp_ge_u32 s43, 6"); A("s_cselect_b32 s28, 6, 0"); A("s_sub_u32 s28, s43, s28")
    A("s_lshr_b32 s31, s28, 1"); A("s_and_b32 s32, s28, 1")
    A("s_mul_i32 s33, s30, 3"); A("s_add_u32 s33, s33, s31")
    A("v_and_b32 v1, 63, v0"); A("v_and_b32 v5, 31, v0"); A("v_bfe_u32 v6, v0, 5, 1"); A("v_lshlrev_b32 v2, 4, v1")
    VLDS, ELDS, NLDS, CNT = 36864, 0, 73728, 73728 + 1024
    A("s_cmp_ge_u32 s43, 6" if SFIRST else "s_cmp_lt_u32 s43, 6"); A("s_cbranch_scc1 L3_red")
    UNR, MR, MI, MN, T, GF = 16, 32, 40, 48, 56, 96
    if PRIO: A("s_setprio 2")
    A("s_lshl_b32 s39, s28, 12")
    A(f"s_add_u32 s46, s28, {XT}"); A("s_cmp_ge_u32 s46, 6"); A("s_cselect_b32 s42, 6, 0"); A("s_sub_u32 s46, s46, s42")
    A("v_lshlrev_b32 v10, 6, v5"); A("v_add_u32 v10, s29, v10"); A("v_cvt_f32_u32 v10, v10"); A(f"v_mul_f32 v10, {f32(1.0/2048)}, v10")
    A("v_cvt_f32_u32 v11, v6"); A("v_mul_f32 v11, 0x41000000, v11"); A("v_mul_f32 v11, v11, v10")
    if B0 == 0: A("s_barrier")
    for ks in range(2):
        gen_frag(A, MR+4*ks, MI+4*ks, [16*ks + c for c in range(8)], 10, 11, T, False)
        if B0 == ks + 1: A("s_barrier")
    G.mark(A, 1)
    for i in range(8): A(f"v_xor_b32 v{MN+i}, 0x80008000, v{MI+i}")
    emit_pi(A, 10, 5, 11); A("s_lshl_b32 s42, s33, 5"); A("v_add_u32 v10, s42, v10")
    A("v_and_b32 v15, 1, v10")
    A("v_cvt_f32_u32 v10, v10"); A(f"v_mul_f32 v10, {f32(1.0/576)}, v10")
    A("v_lshlrev_b32 v11, 3, v6"); A("v_add_u32 v11, s32, v11"); A("v_cvt_f32_u32 v11, v11"); A("v_mul_f32 v11, v11, v10")
    A("v_mul_f32 v8, 0x42000000, v10"); A("v_cos_f32 v8, v8"); A("v_add_f32 v8, v8, v8"); A("v_mov_b32 v9, v8")
    GS = [T + 8, T + 24]
    for kt in range(9):
        g = GS[kt & 1]
        if kt < 2:
            for j in range(8):
                c = 32*kt + 2*CH[j]
                A(f"v_mov_b32 v{T+j}, v11" if c == 0 else f"v_fmamk_f32 v{T+j}, v10, {f32(c)}, v11")
            for j in range(8): A(f"v_cos_f32 v{g+j}, v{T+j}"); A(f"v_sin_f32_e64 v{g+8+j}, -v{T+j}")
        else:
            o = GS[(kt + 1) & 1]
            for j in range(0, 16, 2): A(f"v_pk_fma_f32 {v(g+j,2)}, {v(o+j,2)}, v[8:9], {v(g+j,2)} neg_lo:[0,0,1] neg_hi:[0,0,1]")
        for j in range(8): A(f"v_cvt_pk_bf16_f32 v{GF+8*kt+j}, v{g+2*j}, v{g+2*j+1}")
    A("s_cmp_lg_u32 s32, 0"); A("s_cbranch_scc1 L3_c")
    A("s_mov_b32 exec_hi, 0")
    A(f"v_and_b32 v{GF}, 0xffff0000, v{GF}"); A(f"v_or_b32 v{GF}, 0x3f00, v{GF}")
    A(f"v_and_b32 v{GF+4}, 0xffff0000, v{GF+4}"); A(f"v_or_b32 v{GF+4}, 0x3f00, v{GF+4}"); A("v_lshlrev_b32 v15, 15, v15"); A(f"v_or_b32 v{GF+4}, v15, v{GF+4}")
    A("s_mov_b32 exec_hi, -1")
    A.label("L3_c")
    A("v_bfe_u32 v12, v1, 2, 2"); A("v_lshl_add_u32 v12, v6, 3, v12"); A("v_bfe_u32 v13, v1, 3, 1"); A("v_lshlrev_b32 v13, 6, v13")
    A("v_lshl_add_u32 v12, v12, 7, v13"); A("v_bfe_u32 v13, v1, 4, 1"); A("v_lshl_add_u32 v12, v13, 5, v12")
    A("v_and_b32 v13, 3, v1"); A("v_lshl_add_u32 v12, v13, 3, v12")
    A("s_add_u32 s42, s46, 6"); A("s_lshl_b32 s41, s42, 12"); A("v_add_u32 v10, s41, v12"); A("v_xor_b32 v11, 64, v10")
    A("v_add_u32 v12, s39, v12"); A("v_xor_b32 v13, 64, v12")
    A("s_lshl_b32 s42, s42, 11"); A(f"s_add_u32 s42, s42, {VLDS}"); A("v_add_u32 v15, s42, v2")
    A("s_lshl_b32 s42, s28, 11"); A(f"s_add_u32 s42, s42, {VLDS}"); A("v_add_u32 v14, s42, v2")
    A(f"v_lshlrev_b32 v7, 4, v6"); A(f"v_add_u32 v7, {NLDS}, v7"); A(f"v_mov_b32 v8, {CNT}"); A("v_mov_b32 v9, 1")
    A("s_mul_i32 s42, s32, 18432"); A(f"s_add_u32 s42, s42, {VLDS}"); A("v_add_u32 v3, s42, v2")
    UR, UI, VR, VI = 56, 64, 72, 16
    def rdU(ar, ai):
        for ks in range(2):
            for e in range(2):
                A(f"ds_read_b64_tr_b16 {v(UR+4*ks+2*e,2)}, v{ar} offset:{2048*ks+512*e}")
                A(f"ds_read_b64_tr_b16 {v(UI+4*ks+2*e,2)}, v{ai} offset:{2048*ks+512*e}")
    vr, vi = v(VR, 16), v(VI, 16)
    def mm_both():
        for ks in range(2):
            A(f"{M32} {vr}, {v(UR+4*ks,4)}, {v(MR+4*ks,4)}, {'0' if ks == 0 else vr}")
            A(f"{M32} {vi}, {v(UR+4*ks,4)}, {v(MI+4*ks,4)}, {'0' if ks == 0 else vi}")
            A(f"{M32} {vr}, {v(UI+4*ks,4)}, {v(MN+4*ks,4)}, {vr}")
            A(f"{M32} {vi}, {v(UI+4*ks,4)}, {v(MR+4*ks,4)}, {vi}")
    def wrV(aw):
        for part, b in enumerate((VR, VI)):
            o = 88 if part == 0 else VR
            for i in range(8): A(f"v_cvt_pk_bf16_f32 v{o+i}, v{b+2*i}, v{b+2*i+1}")
            for par in range(2): A(f"ds_write_b128 v{aw}, {v(o+4*par,4)} offset:{18432*par+1024*part}")
    G.mark(A, 2)
    A("s_barrier")
    G.mark(A, 3)
    rdU(12, 13)
    A("s_cmp_eq_u32 s28, 0"); A("s_cbranch_scc1 L3_sp")
    A("s_waitcnt lgkmcnt(0)")
    mm_both()
    A.label("L3_spd")
    A("s_cmp_ge_u32 s46, 3"); A("s_cbranch_scc1 L3_one")
    rdU(10, 11)
    A("s_nop 2")
    wrV(14)
    A("s_waitcnt lgkmcnt(0)")
    mm_both()
    A("v_mov_b32 v14, v15")
    A.label("L3_one")
    A("s_nop 11")
    wrV(14)
    A("s_waitcnt lgkmcnt(0)")
    A("s_mov_b64 exec, 1"); A("ds_add_u32 v8, v9"); A("s_mov_b64 exec, -1")
    G.mark(A, 4)
    A.label("L3_sy")
    A("ds_read_b32 v4, v8"); A("s_waitcnt lgkmcnt(0)"); A("v_readfirstlane_b32 s42, v4"); A("s_cmp_lt_u32 s42, 6"); A("s_cbranch_scc1 L3_sy")
    G.mark(A, 5)
    YA = [16, 32]
    for n in range(11): A(f"ds_read_b128 {v(48+4*n,4)}, v3 offset:{1024*n}")
    for n in range(18):
        A(f"s_waitcnt lgkmcnt({min(10, 17-n)})")
        y = v(YA[n & 1], 16)
        A(f"{M32} {y}, {v(GF+4*n,4)}, {v(48+4*(n%12),4)}, {'0' if n < 2 else y}")
        if n + 11 < 18: A(f"ds_read_b128 {v(48+4*((n+11)%12),4)}, v3 offset:{1024*(n+11)}")
    A("v_add_u32 v14, s39, v2")
    for i in range(4):
        for j in range(0, 4, 2): A(f"v_pk_add_f32 {v(16+4*i+j,2)}, {v(16+4*i+j,2)}, {v(32+4*i+j,2)}")
        A(f"ds_write_b128 v14, {v(16+4*i,4)} offset:{ELDS+1024*i}")
    A("s_waitcnt lgkmcnt(0)")
    G.mark(A, 6)
    A("s_barrier")
    A("s_branch L3_fin")
    A.label("L3_sp"); A.hist = []
    for i in range(4): A(f"ds_read_b128 {v(UNR+4*i,4)}, v7 offset:{32*i}")
    A("s_waitcnt lgkmcnt(0)")
    for ks in range(2):
        A(f"{M32} {vr}, {v(UR+4*ks,4)}, {v(MR+4*ks,4)}, {'0' if ks == 0 else vr}")
        A(f"{M32} {vr}, {v(UI+4*ks,4)}, {v(MN+4*ks,4)}, {vr}")
    A("s_mov_b32 exec_lo, 1"); A("s_mov_b32 exec_hi, 1")
    for i in range(8):
        A(f"v_xor_b32 v{UR+i}, 0x80008000, v{UNR+8+i}"); A(f"v_mov_b32 v{UI+i}, v{UNR+i}")
    A("s_mov_b64 exec, -1"); A("s_nop 1")
    for ks in range(2):
        A(f"{M32} {vi}, {v(UR+4*ks,4)}, {v(MI+4*ks,4)}, {'0' if ks == 0 else vi}")
        A(f"{M32} {vi}, {v(UI+4*ks,4)}, {v(MR+4*ks,4)}, {vi}")
    A("s_branch L3_spd")
    A.label("L3_red"); A.hist = []
    A("s_mul_i32 s35, s29, 36864")
    A("s_mul_i32 s34, s32, 9"); A("s_add_u32 s34, s34, s33")
    A("v_mul_u32_u24 v9, 73728, v5"); A("v_lshl_add_u32 v9, v6, 5, v9")
    A("s_mul_i32 s37, s29, 1152"); A("s_lshl_b32 s38, s34, 6"); A("s_add_u32 s37, s37, s38")
    A("s_lshl_b32 s36, s34, 11"); A("s_add_u32 s36, s36, s35"); A(f"s_add_u32 s36, s36, {G.P_OFF}")
    A("v_lshrrev_b32 v3, 3, v1"); A("v_bfe_u32 v7, v1, 4, 1"); A("v_lshlrev_b32 v7, 2, v7"); A("v_and_b32 v8, 7, v1"); A("v_xor_b32 v7, v7, v8")
    A("v_mul_u32_u24 v3, 1152, v3"); A("v_lshl_add_u32 v3, v7, 4, v3"); A(f"s_add_u32 s40, s35, {G.U_OFF}")
    A(f"v_mov_b32 v10, {CNT}"); A("v_mov_b32 v12, 0"); A("ds_write_b32 v10, v12")
    A("s_mul_i32 s47, s28, 6"); A("s_lshl_b32 s54, s47, 10")
    for i in range(6):
        A(f"s_add_u32 s41, s47, {i}"); A("s_lshr_b32 s42, s41, 2"); A("s_lshl_b32 s42, s42, 7"); A("s_and_b32 s41, s41, 3"); A(f"s_mul_i32 s41, s41, {8*1152}")
        A("s_add_u32 s41, s41, s42"); A(f"s_add_u32 s{48+i}, s41, s40")
    A("s_lshl_b32 s41, s29, 7"); A(f"s_add_u32 s41, s41, {G.UN_OFF}"); A("v_and_b32 v7, 0x70, v2")
    SEL, XV, BS, E, O, PB = 16, 24, 32, 48, 64, 96
    A("s_waitcnt lgkmcnt(0)")
    srd(A, 16, 26, G.WS_SIZE)
    for i in range(6):
        A(f"s_add_u32 m0, s54, {1024*i}"); A(f"buffer_load_dwordx4 v3, s[16:19], s{48+i} offen lds")
    A(f"s_mov_b32 m0, {NLDS}"); A("buffer_load_dwordx4 v7, s[16:19], s41 offen lds")
    srd(A, 8, 4, G.XB); srd(A, 12, 6, G.XB)
    A("s_barrier")
    G.mark(A, 1)
    for fs in range(NP):
        A(f"s_add_u32 s41, s36, {fs*0x240000}")
        for q in range(2): A(f"buffer_load_dwordx4 {v(PB+8*fs+4*q,4)}, v2, s[16:19], s41 offen offset:{1024*q}")
        if fs == BAR_AT - 1:
            emit_pi(A, 10, 5, 11); A("v_lshlrev_b32 v11, 3, v6"); A("v_sub_u32 v10, v10, v11")
            A("v_mov_b32 v11, 0x3f80"); A("v_mov_b32 v15, 0x3f800000")
            for i in range(8):
                e = 16*(i >> 2) + 2*(i & 3)
                A(f"v_cmp_eq_u32 vcc, {e}, v10"); A(f"v_cmp_eq_u32 s[44:45], {e+1}, v10")
                A(f"v_cndmask_b32 v{SEL+i}, 0, v11, vcc"); A(f"v_cndmask_b32 v{SEL+i}, v{SEL+i}, v15, s[44:45]")
            A("s_lshl_b32 s42, s31, 13"); A("v_add_u32 v14, s42, v2")
            A(f"v_mov_b32 v12, {f32(G.BSCALE)}"); A("v_mov_b32 v13, v12")
            A(f"s_waitcnt vmcnt({2*BAR_AT})")
            G.mark(A, 2)
            A("s_barrier")
            G.mark(A, 3)
            A(f"buffer_load_dwordx4 {v(XV,4)}, v9, s[8:11], s37 offen"); A(f"buffer_load_dwordx4 {v(XV+4,4)}, v9, s[8:11], s37 offen offset:16")
    G.mark(A, 4)
    bs = v(BS, 16)
    def psum(fs):
        A(f"s_waitcnt vmcnt({2*(NP-1-fs) + (2 if fs < BAR_AT else 0)})")
        for q in range(2): A(f"{M32} {bs}, {v(SEL+4*q,4)}, {v(PB+8*fs+4*q,4)}, {'0' if fs == 0 and q == 0 else bs}")
    for fs in range(PS1): psum(fs)
    SC = 2.0 / (576 * 2048)
    XU = PB
    assert PS1 >= 2
    A("s_lshl_b32 s42, s32, 31"); A(f"s_xor_b32 s42, s42, {f32(SC)}"); A("v_mov_b32 v10, s42"); A("v_mov_b32 v11, s42")
    A(f"v_mov_b32 v4, {f32(SC)}"); A(f"v_mov_b32 v5, {f32(SC)}")
    G.mark(A, 5)
    A("s_barrier")
    G.mark(A, 6)
    for i in range(4): A(f"ds_read_b128 {v(E+4*i,4)}, v14 offset:{ELDS+1024*i}"); A(f"ds_read_b128 {v(O+4*i,4)}, v14 offset:{ELDS+4096+1024*i}")
    A(f"s_waitcnt vmcnt({2*(NP-BAR_AT)})")
    for i in range(8): A(f"v_lshlrev_b32 v{XU+2*i}, 16, v{XV+i}"); A(f"v_and_b32 v{XU+2*i+1}, 0xffff0000, v{XV+i}")
    for i in range(4):
        A(f"s_waitcnt lgkmcnt({6-2*i})")
        for j in (0, 2): A(f"v_pk_mul_f32 {v(E+4*i+j,2)}, {v(E+4*i+j,2)}, v[4:5]")
        for j in (0, 2): A(f"v_pk_fma_f32 {v(E+4*i+j,2)}, {v(O+4*i+j,2)}, v[10:11], {v(E+4*i+j,2)}")
        for j in (0, 2): A(f"v_cvt_pk_bf16_f32 v{80+2*i+j//2}, v{E+4*i+j}, v{E+4*i+j+1}")
    for i in range(8): A(f"v_lshlrev_b32 v{E+2*i}, 16, v{80+i}"); A(f"v_and_b32 v{E+2*i+1}, 0xffff0000, v{80+i}")
    for i in range(8): A(f"v_pk_add_f32 {v(E+2*i,2)}, {v(E+2*i,2)}, {v(XU+2*i,2)}")
    for i in range(8): A(f"v_cvt_pk_bf16_f32 v{80+i}, v{E+2*i}, v{E+2*i+1}")
    for i in range(8): A(f"v_lshlrev_b32 v{E+2*i}, 16, v{80+i}"); A(f"v_and_b32 v{E+2*i+1}, 0xffff0000, v{80+i}")
    G.mark(A, 7)
    for fs in range(PS1, NP): psum(fs)
    G.mark(A, 8)
    for i in range(8): A(f"v_pk_mul_f32 {v(BS+2*i,2)}, {v(BS+2*i,2)}, v[12:13]")
    for i in range(8): A(f"v_cvt_pk_bf16_f32 v{80+i}, v{BS+2*i}, v{BS+2*i+1}")
    for i in range(8):
        A(f"v_lshlrev_b32 v{O+2*i}, 16, v{80+i}"); A(f"v_and_b32 v{O+2*i+1}, 0xffff0000, v{80+i}")
        A(f"v_pk_add_f32 {v(E+2*i,2)}, {v(E+2*i,2)}, {v(O+2*i,2)}")
        A(f"v_cvt_pk_bf16_f32 v{88+i}, v{E+2*i}, v{E+2*i+1}")
    for i in range(2): A(f"buffer_store_dwordx4 {v(88+4*i,4)}, v9, s[12:15], s37 offen offset:{16*i} {OUTFL}")
    G.mark(A, 9)
    A.label("L3_fin")
    if G.STAMPS: A("s_waitcnt lgkmcnt(0)")
    G.stamp_end(A, 3, 26, "k2")
    A.label("L3_end"); A("s_endpgm")
    return (name, (192, 768, CNT + 16), 168, 168)
```

```python
from asmlib import *
import gen as G
from gen import M32, M16, f32
from gen_mid import mid_parts

class Cfg:
    EP = 2; LA = 5; NF = 8; BD = 2; WP = 2
    PRO = 9; Q0 = [3, 2, 2, 2, 2, 2]; QA = 3; QH = 4; QB = [4, 3, 3, 4, 3]
    xmap = 84
    wr = 105; w0 = 5; wt = 1700
    RE = {"O0": -2, "O1": 0, "P0": 2}; CHK = [0, 2, 4]; hold = False
    fl = [16, 24]
    scost = 24; wcost = 16; rcost = 6
    abl = ""
    dcost = 10; bcost = 24
    mid = True
    pfk2 = 12
    barmark = None
    f1 = ''; f2 = ''
    pads = 2
    pollpre = 3
    trace = None
    touch = False
    pf = False
    d3 = 2
    dH = 7
    fl2 = 12
    chk2 = 7
BLK = 12288; NB = 13; ACT0 = 7; BIAS = NB * BLK
orderB = [(q, k) for k in ("O0","O1","P0","P1","O2","P2") for q in (0, 1)]
for q in range(2, 5): orderB += [(q, k) for k in ("O0","O1","O2","P0","P1","P2")]

def plan(cfg):
    groups = []
    for t in range(6): groups.append([("xs", 2*t), ("xs", 2*t+1), ("w1", 0, t)])
    seq = [[("w1", p, t)] for p in range(1, 4) for t in range(6)] + [[("wh", t)] for t in range(3)]
    for i, (q, k) in enumerate(orderB): seq.append([("w2", i)])
    i = 0
    while i < len(seq):
        n = cfg.EP
        if seq[i][-1][0] == "w2" and orderB[seq[i][-1][1]][0] == 4: n = 3
        if seq[i][-1][0] == "wh": n = 3 if seq[i][-1][1] == 0 and cfg.EP > 1 else n
        groups.append([x for l in seq[i:i+n] for x in l]); i += n
    ep = {x: e for e, g in enumerate(groups) for x in g}
    eH = ep[("wh", 0)]
    RE = {k: ep[("w2", orderB.index((0, k)))] for k in ("O0", "O1", "O2", "P0", "P1", "P2")}
    for k, d in cfg.RE.items(): RE[k] = eH + d
    for j in range(3): groups[RE[f"P{j}"]][:0] = [("pa", j, 0), ("pa", j, 1)]
    loads = [x for g in groups for x in g]
    ep = {x: e for e, g in enumerate(groups) for x in g}
    NE = len(groups)
    firstO = {j: RE[f"O{j}"] for j in range(3)}
    resv = {}
    for b in range(6):
        p = (3*b) // 4
        nxt = ("w1", p + 1, 0) if p < 3 else ("wh", 0)
        resv[ACT0 + b] = [(ep[nxt], firstO[b // 2] + 1)]
    if cfg.mid:
        for b in (4, 5): resv[ACT0 + b].append((-2, 0))
    chk = {j: eH + cfg.CHK[j] for j in range(3)}
    free_at = [-1] * NB; slot = {}; issue = {}
    todo = list(loads)
    for e in range(-1, NE):
        quota = cfg.PRO if e < 0 else cfg.Q0[e] if e < 6 else cfg.QA if e < ep[("wh", 0)] else cfg.QH if e == ep[("wh", 0)] else cfg.QB[min(len(cfg.QB) - 1, e - ep[("w2", 0)])]
        k = 0
        while k < len(todo) and quota > 0:
            x = todo[k]
            if x[0] == "pa" and e < chk[x[1]]:
                k += 1; continue
            rel = ep[x] + 1
            held = sum(1 for y in todo[:k] if chk[y[1]] < rel and cfg.hold)
            c = [s_ for s_ in range(NB) if free_at[s_] <= e and not any(e < hi and rel > lo for lo, hi in resv.get(s_, []))]
            if len(c) <= held: break
            s_ = max(c, key=lambda y: (y in resv, -y))
            slot[x] = s_; issue[x] = e; free_at[s_] = rel; todo.pop(k); quota -= 1
    assert not todo
    for x in loads: assert issue[x] < ep[x], (x, issue[x], ep[x])
    return loads, ep, slot, issue, NE, firstO, chk, RE

def summ(lines):
    c = {}
    for l in lines:
        op = l.split()[0]
        k = ("M" if "mfma" in op else "T" if op.startswith(("v_exp", "v_rcp")) else "V" if op.startswith("v_") else "tr" if "tr_b16" in op else "r128" if op.startswith("ds_read") else
             "dsw" if op.startswith("ds_write") else "DMA" if " lds" in l else "ST" if "store" in op else "LD" if "load" in op else "BAR" if op == "s_barrier" else
             "w" if op == "s_waitcnt" else "nop" if op == "s_nop" else "s")
        c[k] = c.get(k, 0) + 1
    return " ".join(f"{k}{n}" for k, n in c.items())

def k1(A, cfg=Cfg):
    name = "mlp_kernel"
    loads, ep, slot, issue, NE, firstO, chk, RE = plan(cfg)
    if getattr(cfg, "verbose", False): print("lead", [(x[0], ep[x] - issue[x]) for x in loads])
    kernel_head(A, name)
    A("s_cmp_ge_u32 s2, 256"); A("s_cbranch_scc1 L2_end")
    G.stamp_begin(A)
    A("s_load_dwordx4 s[4:7], s[0:1], 32"); A("s_load_dwordx2 s[24:25], s[0:1], 48"); A("s_load_dwordx2 s[26:27], s[0:1], 72")
    sW, sFP, sMT, sODD, sRH, sCH, sCX = 28, 29, 30, 31, 32, 33, 34
    sC1, sDIR, sM0, sXS, sT0, sSO, sACT, sACH, sPA, sP, sPH, sFL, sFP2, sC2, sDP, sS1, sS2 = range(35, 52)
    sROW = 52
    A("v_lshrrev_b32 v4, 6, v0"); A(f"v_readfirstlane_b32 s{sW}, v4")
    A(f"s_bfe_u32 s{sODD}, s2, 0x10003")
    if cfg.xmap == 162:
        A(f"s_and_b32 s{sFP}, s2, 7"); A(f"s_lshr_b32 s{sMT}, s2, 4")
    else:
        A(f"s_and_b32 s{sFP}, s2, 6"); A(f"s_bfe_u32 s{sMT}, s2, 0x10004"); A(f"s_add_u32 s{sFP}, s{sFP}, s{sMT}")
        A(f"s_and_b32 s{sMT}, s2, 1"); A(f"s_lshl_b32 s{sMT}, s{sMT}, 3"); A(f"s_lshr_b32 s{sT0}, s2, 5"); A(f"s_add_u32 s{sMT}, s{sMT}, s{sT0}")
    A(f"s_lshr_b32 s{sRH}, s{sW}, 1"); A(f"s_and_b32 s{sCH}, s{sW}, 1"); A(f"s_xor_b32 s{sCX}, s{sCH}, s{sODD}")
    A(f"s_lshl_b32 s{sC2}, s{sODD}, 10")
    A(f"s_mul_i32 s{sC1}, s{sFP}, 1152"); A(f"s_add_u32 s{sC1}, s{sC1}, s{sC2}")
    A(f"s_lshl_b32 s{sDIR}, s{sODD}, 8"); A(f"s_sub_u32 s{sDIR}, 128, s{sDIR}")
    A(f"s_mul_i32 s{sM0}, s{sW}, 3072")
    A(f"s_lshl_b32 s{sXS}, s{sMT}, 2"); A(f"s_add_u32 s{sXS}, s{sXS}, s{sW}"); A(f"s_mul_i32 s{sXS}, s{sXS}, 36864")
    if G.XS_OFF: A(f"s_add_u32 s{sXS}, s{sXS}, {G.XS_OFF}")
    zjob = []; Z = zjob.append
    Z(f"s_lshl_b32 s{sDP}, s{sDIR}, 5")
    Z(f"s_mul_i32 s{sACT}, s2, 73728"); Z(f"s_add_u32 s{sACT}, s{sACT}, {G.ACT_OFF}")
    Z(f"s_lshl_b32 s{sT0}, s{sCX}, 11"); Z(f"s_sub_u32 s{sACH}, s{sACT}, s{sT0}"); Z(f"s_add_u32 s{sACH}, s{sACH}, 16384")
    Z(f"s_xor_b32 s{sFP2}, s2, 8")
    Z(f"s_mul_i32 s{sPA}, s{sFP2}, 73728"); Z(f"s_mul_i32 s{sT0}, s{sRH}, 18432"); Z(f"s_add_u32 s{sPA}, s{sPA}, s{sT0}")
    Z(f"s_mul_i32 s{sT0}, s{sCH}, 3072"); Z(f"s_add_u32 s{sPA}, s{sPA}, s{sT0}"); Z(f"s_add_u32 s{sPA}, s{sPA}, {G.ACT_OFF}")
    Z(f"s_lshl_b32 s{sFP2}, s{sFP2}, 10"); Z(f"s_add_u32 s{sFP2}, s{sFP2}, {G.FLG_OFF}")
    Z(f"s_lshl_b32 s{sFL}, s2, 2"); Z(f"s_add_u32 s{sFL}, s{sFL}, s{sW}"); Z(f"s_lshl_b32 s{sFL}, s{sFL}, 8"); Z(f"s_add_u32 s{sFL}, s{sFL}, {G.FLG_OFF}")
    Z(f"s_mul_i32 s{sP}, s{sFP}, {0x240000}"); Z(f"s_lshl_b32 s{sT0}, s{sMT}, 1"); Z(f"s_add_u32 s{sT0}, s{sT0}, s{sRH}"); Z(f"s_mul_i32 s{sT0}, s{sT0}, 73728")
    Z(f"s_add_u32 s{sP}, s{sP}, s{sT0}"); Z(f"s_add_u32 s{sP}, s{sP}, {G.P_OFF}")
    Z(f"s_lshl_b32 s{sT0}, s{sODD}, 1"); Z(f"s_add_u32 s{sS2}, s{sT0}, s{sCH}")
    Z(f"s_lshl_b32 s{sT0}, s{sS2}, 10"); Z(f"s_add_u32 s{sPH}, s{sP}, s{sT0}"); Z(f"s_add_u32 s{sPH}, s{sPH}, 16384")
    Z(f"s_lshl_b32 s{sT0}, s{sODD}, 15"); Z(f"s_add_u32 s{sP}, s{sP}, s{sT0}"); Z(f"s_lshl_b32 s{sT0}, s{sCH}, 11"); Z(f"s_add_u32 s{sP}, s{sP}, s{sT0}")
    Z(f"s_mul_i32 s{sT0}, s{sFP}, {576*1152}")
    for j in range(3):
        Z(f"s_mul_i32 s{sS1}, s{sODD}, {(480 - 192*j)*1152}")
        Z(f"s_add_u32 s{sROW+j}, s{sT0}, s{sS1}"); Z(f"s_add_u32 s{sROW+j}, s{sROW+j}, {96*j*1152}")
        Z(f"s_sub_u32 s{sROW+3+j}, s{sT0}, s{sS1}"); Z(f"s_add_u32 s{sROW+3+j}, s{sROW+3+j}, {(480 - 96*j)*1152}")
    VL16, VBI, VBH, C1, C2, VFL, VFV, VPF = 1, 2, 3, 4, 5, 6, 7, 8
    VW1, VWH, VO, VP = 9, 12, 15, 18
    TRA, TRH, TRB, TRBH, LX0, LX1 = 21, 24, 27, 33, 36, 39
    VAW, VAH, VAG, ARD, ARP, ARL = 42, 44, 45, 47, 49, 50
    TMP, STG, FR, ACC, BSV = 52, 60, 76, 108, 224
    assert FR + 4*cfg.NF <= ACC and ACC + 112 <= BSV
    def bs(f): return a(4*f, 4) if f < 64 else v(BSV + 4*(f - 64), 4)
    xsreg = lambda kk, gi: bs(36 + kk if gi == 0 else kk)
    kpos = {"O0": 0, "O1": 3, "P0": 6, "P1": 9, "O2": 12, "P2": 15}
    MID = mid_parts(16, sW, (ACT0 + 4) * BLK, [58, 59, 60, 61, 62, 96, 97, 98, 99, 100], TMP, None)
    assert MID["vend"] <= 256
    t = list(range(MID["free16"], MID["free16"] + 16))
    A(f"v_and_b32 v{t[0]}, 63, v0"); A(f"v_lshlrev_b32 v{VL16}, 4, v{t[0]}")
    A(f"v_bfe_u32 v{t[1]}, v0, 4, 1"); A(f"v_lshlrev_b32 v{t[1]}, 2, v{t[1]}"); A(f"v_and_b32 v{t[2]}, 7, v0"); A(f"v_xor_b32 v{t[1]}, v{t[1]}, v{t[2]}")
    A(f"v_bfe_u32 v{t[2]}, v0, 3, 3"); A(f"s_mul_i32 s{sT0}, s{sW}, 24"); A(f"v_add_u32 v{t[3]}, s{sT0}, v{t[2]}")
    A(f"v_mul_u32_u24 v{VW1}, 9216, v{t[3]}"); A(f"v_lshl_add_u32 v{VW1}, v{t[1]}, 4, v{VW1}")
    for k in (1, 2): A(f"v_add_u32 v{VW1+k}, {k*(8*9216 - 1024)}, v{VW1}")
    A(f"v_lshrrev_b32 v{t[4]}, 4, v0"); A(f"v_sub_u32 v{t[5]}, 8, v{t[4]}"); A(f"s_cmp_eq_u32 s{sODD}, 1"); A("s_cselect_b64 vcc, -1, 0")
    A(f"v_cndmask_b32 v{t[4]}, v{t[4]}, v{t[5]}, vcc"); A(f"v_and_b32 v{t[5]}, 15, v0"); A(f"v_lshlrev_b32 v{t[5]}, 2, v{t[5]}"); A(f"v_lshl_add_u32 v{t[4]}, v{t[4]}, 6, v{t[5]}")
    A(f"s_lshl_b32 s{sS1}, s{sFP}, 1"); A(f"s_add_u32 s{sS1}, s{sS1}, s{sODD}"); A(f"s_mul_i32 s{sS1}, s{sS1}, 576")
    vm = []; lds = []
    st = dict(vmw=0, ldsw=-1, lastw=-1, lastr=-1)
    def emit(x):
        if isinstance(x, tuple):
            if x[0] == "W": A(x[1]); lds.append("w"); st["lastw"] = len(lds) - 1
            elif x[0] == "R": A(x[1]); lds.append("r"); st["lastr"] = len(lds) - 1
            elif x[0] == "F": x[1]()
            else:
                if x[1][0] == "st" and "s" in cfg.abl: return
                if "a" in cfg.abl and x[1][0] == "act": vm.append(x[1]); A(f"buffer_load_dword v{VFV}, v{VL16}, s[20:23], 0 offen"); return
                if "p" in cfg.abl and x[1][0][0] == "pa": x = (x[0].replace(f"s{sSO} offen", f"s{sXS} offen").replace(" sc1", ""), x[1])
                A(x[0]); vm.append(x[1])
        else: A(x)
    def wait(vm_upto=None, lds_upto=None):
        w = []
        if vm_upto is not None and vm_upto + 1 > st["vmw"]:
            n = len(vm) - 1 - vm_upto; assert n <= 63, n
            w.append(f"vmcnt({n})"); st["vmw"] = vm_upto + 1
        if lds_upto is not None and lds_upto > st["ldsw"]:
            n = min(14, len(lds) - 1 - lds_upto)
            w.append(f"lgkmcnt({n})"); st["ldsw"] = len(lds) - 1 - n
        if w: A("s_waitcnt " + " ".join(w))
    def wait_vm(upto): wait(vm_upto=upto)
    def wait_lds(upto): wait(lds_upto=upto)
    colstate = dict(w1=0, w2=0)
    def dma(x):
        pre = [f"s_add_u32 m0, s{sM0}, {slot[x] * BLK}"]; fl = ""
        if x[0] == "xs": pre.append(f"s_add_u32 s{sSO}, s{sXS}, {3072 * x[1]}"); vo = [VL16] * 3; sr = 16
        elif x[0] == "pa": pre.append(f"s_add_u32 s{sSO}, s{sPA}, {6144 * x[1] + 36864 * x[2]}"); vo = [VL16] * 3; sr = 16; fl = " sc1"
        elif x[0] in ("w1", "wh"):
            p = x[1] if x[0] == "w1" else 4
            while colstate["w1"] < p: pre.append(f"s_add_u32 s{sC1}, s{sC1}, s{sDIR}"); colstate["w1"] += 1
            pre.append(f"s_add_u32 s{sSO}, s{sC1}, {x[-1] * (96 if p < 4 else 192) * 9216}")
            b = VW1 if p < 4 else VWH; vo = [b, b+1, b+2]; sr = 8; fl = cfg.f1
        else:
            q, k = orderB[x[1]]
            while colstate["w2"] < q: pre.append(f"s_add_u32 s{sC2}, s{sC2}, s{sDIR}"); colstate["w2"] += 1
            while colstate["w2"] > q: pre.append(f"s_sub_u32 s{sC2}, s{sC2}, s{sDIR}"); colstate["w2"] -= 1
            pre.append(f"s_add_u32 s{sSO}, s{sROW + int(k[1]) + (3 if k[0] == 'P' else 0)}, s{sC2}")
            b = VO if k[0] == "O" else VP; vo = [b, b+1, b+2]; sr = 12; fl = cfg.f2
        return [(pre if k == 0 else []) + [(f"buffer_load_dwordx4 v{vo[k]}, s[{sr}:{sr+3}], s{sSO} offen offset:{1024*k}{fl} lds", (x, k))] for k in range(3)]
    late = []; L = late.append
    AB = ACT0 * BLK
    r4, hh, cq, cc, u0, u1 = t[6:12]
    L(f"v_bfe_u32 v{r4}, v0, 2, 2"); L(f"v_bfe_u32 v{hh}, v0, 5, 1"); L(f"v_bfe_u32 v{cq}, v0, 4, 1"); L(f"v_and_b32 v{cc}, 3, v0")
    L(f"v_lshl_add_u32 v{u0}, v{hh}, 3, v{r4}"); L(f"v_lshlrev_b32 v{u0}, 7, v{u0}"); L(f"v_lshl_add_u32 v{u0}, v{cc}, 3, v{u0}")
    L(f"v_and_b32 v{u1}, 2, v{r4}"); L(f"v_or_b32 v{u1}, v{u1}, v{cq}"); L(f"v_lshl_add_u32 v{u0}, v{u1}, 5, v{u0}")
    L(f"s_lshl_b32 s{sT0}, s{sCH}, 6"); L(f"v_xor_b32 v{TRA}, s{sT0}, v{u0}")
    L(f"v_add_u32 v{LX0}, s{sM0}, v{VL16}"); L(f"s_xor_b32 s{sT0}, s{sW}, 1"); L(f"s_mul_i32 s{sT0}, s{sT0}, 3072"); L(f"v_add_u32 v{LX1}, s{sT0}, v{VL16}")
    for b in (TRA, LX0, LX1):
        L(f"v_add_u32 v{b+1}, 0x10000, v{b}"); L(f"v_add_u32 v{b+2}, 0x20000, v{b}")
    L(f"v_lshlrev_b32 v{VBH}, 4, v{hh}"); L(f"v_add_u32 v{VBH}, {BIAS}, v{VBH}"); L(f"s_lshl_b32 s{sT0}, s{sCX}, 7"); L(f"v_add_u32 v{VBI}, s{sT0}, v{VBH}")
    z = list(range(ACC + 80, ACC + 96))
    VFW, VL4 = TMP + 6, TMP + 7
    r4, hh, cq, cc, u0, u1 = z[6:12]
    Z(f"v_bfe_u32 v{z[0]}, v0, 2, 4"); Z(f"s_mul_i32 s{sT0}, s{sW}, 48"); Z(f"v_add_u32 v{z[0]}, s{sT0}, v{z[0]}"); Z(f"v_mul_u32_u24 v{VWH}, 9216, v{z[0]}")
    Z(f"v_bfe_u32 v{r4}, v0, 2, 2"); Z(f"v_bfe_u32 v{hh}, v0, 5, 1"); Z(f"v_bfe_u32 v{cq}, v0, 4, 1"); Z(f"v_and_b32 v{cc}, 3, v0")
    Z(f"v_lshl_add_u32 v{VWH}, v{cc}, 4, v{VWH}"); Z(f"s_lshl_b32 s{sT0}, s{sODD}, 6"); Z(f"v_add_u32 v{VWH}, s{sT0}, v{VWH}")
    for k in (1, 2): Z(f"v_add_u32 v{VWH+k}, {k*(16*9216 - 1024)}, v{VWH}")
    Z(f"v_lshlrev_b32 v{z[1]}, 2, v{cq}"); Z(f"v_lshl_or_b32 v{z[1]}, v{hh}, 1, v{z[1]}"); Z(f"v_and_b32 v{z[2]}, 7, v0"); Z(f"v_xor_b32 v{z[1]}, v{z[1]}, v{z[2]}"); Z(f"v_lshlrev_b32 v{z[1]}, 4, v{z[1]}")
    Z(f"v_bfe_u32 v{z[2]}, v0, 3, 3"); Z(f"s_mul_i32 s{sT0}, s{sW}, 24"); Z(f"v_add_u32 v{z[3]}, s{sT0}, v{z[2]}")
    Z(f"v_mov_b32 v{z[0]}, s{sODD}"); Z(f"v_cmp_eq_u32 vcc, 1, v{z[0]}")
    for k in range(3):
        Z(f"v_add_u32 v{z[0]}, {8*k}, v{z[3]}")
        Z(f"v_and_b32 v{z[2]}, 0x60, v{z[0]}"); Z(f"v_lshlrev_b32 v{z[2]}, 1, v{z[2]}"); Z(f"v_sub_u32 v{z[2]}, v{z[0]}, v{z[2]}"); Z(f"v_add_u32 v{z[2]}, 64, v{z[2]}")
        Z(f"v_cndmask_b32 v{z[4]}, v{z[0]}, v{z[2]}, vcc"); Z(f"v_cndmask_b32 v{z[5]}, v{z[2]}, v{z[0]}, vcc")
        Z(f"v_mul_u32_u24 v{z[4]}, 1152, v{z[4]}"); Z(f"v_mul_u32_u24 v{z[5]}, 1152, v{z[5]}")
        Z(f"v_add_u32 v{z[12]}, {2048 - 1024*k}, v{z[1]}")
        Z(f"v_add_u32 v{VO+k}, v{z[4]}, v{z[12]}"); Z(f"v_add_u32 v{VP+k}, v{z[5]}, v{z[12]}")
    Z(f"v_lshl_add_u32 v{u0}, v{hh}, 3, v{r4}")
    Z(f"v_lshlrev_b32 v{TRH}, 6, v{u0}"); Z(f"v_lshl_add_u32 v{TRH}, v{cq}, 5, v{TRH}"); Z(f"v_lshl_add_u32 v{TRH}, v{cc}, 3, v{TRH}")
    Z(f"v_and_b32 v{u1}, 2, v{r4}"); Z(f"v_or_b32 v{u1}, v{u1}, v{cq}")
    Z(f"v_lshlrev_b32 v{u0}, 4, v{hh}"); Z(f"v_lshl_add_u32 v{u0}, v{cq}, 2, v{u0}"); Z(f"v_add_u32 v{u0}, v{u0}, v{r4}")
    Z(f"v_lshlrev_b32 v{u0}, 7, v{u0}"); Z(f"v_lshl_add_u32 v{u0}, v{cc}, 3, v{u0}"); Z(f"v_lshl_add_u32 v{u0}, v{u1}, 5, v{u0}")
    Z(f"s_lshl_b32 s{sT0}, s{sCH}, 6"); Z(f"v_xor_b32 v{TRB}, s{sT0}, v{u0}"); Z(f"v_xor_b32 v{TRB+3}, 32, v{TRB}")
    Z(f"s_lshl_b32 s{sT0}, s{sS2}, 5"); Z(f"v_xor_b32 v{TRBH}, s{sT0}, v{u0}")
    for b in (TRH, TRB, TRB+3, TRBH):
        Z(f"v_add_u32 v{b+1}, 0x10000, v{b}"); Z(f"v_add_u32 v{b+2}, 0x20000, v{b}")
    Z(f"s_lshl_b32 s{sT0}, s{sW}, 10"); Z(f"s_add_u32 s{sT0}, s{sT0}, {AB}"); Z(f"v_add_u32 v{VAH}, s{sT0}, v{VL16}")
    Z(f"s_lshl_b32 s{sT0}, s{sCX}, 13"); Z(f"v_add_u32 v{VAW}, s{sT0}, v{VAH}"); Z(f"v_xor_b32 v{VAW+1}, 1024, v{VAW}"); Z(f"v_add_u32 v{VAH}, 0x10000, v{VAH}")
    Z(f"s_lshl_b32 s{sS2}, s{sCX}, 11")
    for gi in range(2):
        Z(f"s_xor_b32 s{sT0}, s{sW}, {gi}"); Z(f"s_mul_i32 s{sT0}, s{sT0}, 18432"); Z(f"s_add_u32 s{sT0}, s{sT0}, s{sS2}"); Z(f"v_add_u32 v{VAG+gi}, s{sT0}, v{VL16}")
    Z(f"v_and_b32 v{u0}, 15, v0"); Z(f"v_lshlrev_b32 v{u0}, 4, v{u0}"); Z(f"v_lshl_add_u32 v{u0}, v{cq}, 9, v{u0}")
    Z(f"v_lshl_add_u32 v{ARL}, v{hh}, 10, v{u0}")
    Z(f"v_lshl_add_u32 v{ARD}, v{hh}, 12, v{u0}"); Z(f"s_lshl_b32 s{sT0}, s{sRH}, 11"); Z(f"s_add_u32 s{sT0}, s{sT0}, {AB}"); Z(f"v_add_u32 v{ARD}, s{sT0}, v{ARD}")
    Z(f"v_add_u32 v{ARD+1}, 0x10000, v{ARD}")
    Z(f"v_mov_b32 v{C1}, {f32(0.5**0.5)}")
    Z(f"v_lshlrev_b32 v{VFL}, 8, v{cc}"); Z(f"v_lshrrev_b32 v{VL4}, 2, v{VL16}")

    def vmtag(Lst, tag): return [(x[1], (tag, i)) if isinstance(x, tuple) else x for i, x in enumerate(Lst)]
    clk = [300]; nd = [0]; pro = []
    def est(x):
        x = x[0] if isinstance(x, tuple) else x
        return 9 if x.startswith(("v_cos", "v_sin", "v_mfma")) else 4.5
    def weave(code):
        for x in code:
            emit(x); clk[0] += est(x)
            if pro and clk[0] >= cfg.wt + (nd[0] - cfg.w0) * cfg.wr and not (isinstance(x, str) and x.startswith(("s_cmp", "s_cselect"))):
                for y in pro.pop(0): emit(y)
                nd[0] += 1; clk[0] += 12
    sB = 101
    A(f"s_mov_b32 s{sB}, s{sS1}")
    if cfg.mid:
        for x in MID["setup"] + MID["setup2"]: A(x)
    k0 = 0
    if cfg.pads == 1: warm_at = len(A.lines)
    A("s_waitcnt lgkmcnt(0)")
    clk[0] = 900
    srd(A, 16, 26, G.WS_SIZE); srd(A, 8, 4, G.W1B); srd(A, 20, 6, 4608 * 2)
    A("s_sub_u32 s12, s24, 2048"); A("s_subb_u32 s13, s25, 0"); A(f"s_mov_b32 s14, {G.W1B + 2048}"); A("s_mov_b32 s15, 0x20000")
    if cfg.mid:
        for x in vmtag(MID["loads"], "mid"): emit(x)
    emit((f"buffer_load_dword v{t[12]}, v{t[4]}, s[20:23], s{sB} offen", ("bias", 0)))
    nfirst = len(vm)
    pro += [d for x in loads if issue[x] < 0 for d in dma(x)]
    for _ in range(cfg.w0):
        for y in pro.pop(0): emit(y)
        nd[0] += 1
    if cfg.barmark == -9: G.mark(A, 1)
    weave(late[k0:])
    if cfg.mid: weave(MID["gen"])
    mk_ = (lambda i: G.mark(A, i)) if cfg.barmark is None else (lambda i: None)
    pm = (lambda i: G.mark(A, i)) if cfg.barmark == -9 else (lambda i: None)
    mk_(1); pm(2)
    if cfg.pads == 2: warm_at = len(A.lines)
    wait_vm(nfirst - 1); pm(3)
    bi = [f"v_lshlrev_b32 v{t[0]}, 16, v{t[12]}", f"v_and_b32 v{t[1]}, 0xffff0000, v{t[12]}", f"v_mul_f32 v{t[0]}, {f32(G.LOG2E)}, v{t[0]}", f"v_mul_f32 v{t[1]}, {f32(G.LOG2E)}, v{t[1]}",
          f"v_lshlrev_b32 v{t[2]}, 3, v0", f"v_add_u32 v{t[2]}, {BIAS}, v{t[2]}", "v_cmp_gt_u32 vcc, 144, v0", f"s_and_saveexec_b64 s[{sS1}:{sS2}], vcc",
          f"ds_write_b64 v{t[2]}, {v(t[0],2)}", f"s_mov_b64 exec, s[{sS1}:{sS2}]"]
    assert sS1 % 2 == 0
    for x in bi: A(x)
    if cfg.mid:
        A("s_barrier"); clk[0] += 250; pm(4)
        n1 = len(MID["body1"])
        weave(MID["body1"][:n1//3]); pm(5)
        weave(MID["body1"][n1//3:2*n1//3]); pm(6)
        weave(MID["body1"][2*n1//3:]); pm(7)
        A("s_barrier"); pm(8)
        for x in vmtag(MID["body2"], "mids"): emit(x)
        pm(9)
    if getattr(cfg, "verbose", False): print("prologue est clk", clk[0], "dmas left", len(pro))
    while pro:
        for y in pro.pop(0): emit(y)
    A("s_waitcnt lgkmcnt(0)")
    mk_(2)
    if cfg.pads: A.page_pads("L2")

    def tile(i): return ACC + 16 * i
    def win(base, o): return f"v{base + (o >> 16)} offset:{o & 0xffff}"
    units = []
    accA = [0, 2, 5, 0]
    def oread(j, c, rt): return f"ds_read_b128 {bs(4*(kpos['O%d' % j]+c)+rt)}, {win(ARD, (3*j+c)*8192 + (rt >> 1)*1024 + (rt & 1)*256)}"
    for p in range(4):
        for kk in range(36):
            x = ("w1", p, kk // 6); T0 = accA[p]; rd = []
            if kk == 0 and p == 0: rd += [f"ds_read_b128 {v(tile(4)+4*q4,4)}, v{VBI} offset:{32*q4}" for q4 in range(4)]
            if 26 <= kk < 34 and kk % 2 == 0:
                q4 = (kk - 26) // 2
                rd.append(f"ds_read_b128 {v(tile(4)+4*q4,4)}, v{VBI if p < 3 else VBH} offset:{256*(p+1)+32*q4}")
            if p == 0:
                o = slot[("xs", kk // 3)] * BLK + 1024 * (kk % 3)
                rd += [f"ds_read_b128 {xsreg(kk,0)}, {win(LX0, o)}", f"ds_read_b128 {xsreg(kk,1)}, {win(LX1, o)}"]
            units.append(dict(ep=ep[x], rd=rd, tr=(TRA, slot[x]*BLK + 2048*(kk % 6), 512), ph="A", p=p, kk=kk,
                              mf=[(M32, v(tile(T0+gi), 16), xsreg(kk, gi), v(tile(T0+gi if kk else 4), 16)) for gi in range(2)]))
    for kk in range(36):
        x = ("wh", kk // 12)
        rd = []
        units.append(dict(ep=ep[x], rd=rd, tr=(TRH, slot[x]*BLK + 1024*(kk % 12), 256), ph="A", p=4, kk=kk, mf=[(M32, v(tile(4), 16), xsreg(kk, 0), v(tile(4), 16))]))
    nA = len(units)
    accB = {0: 2, 1: 5, 2: 0, 3: 2, 4: 4}
    seen = set(cfg.RE); cnt = {}
    def parp(j): return [f"s_cmp_eq_u32 s{sRH}, 0", f"s_mov_b32 s{sT0}, {slot[('pa', j, 1)]*BLK}", f"s_cselect_b32 s{sT0}, {slot[('pa', j, 0)]*BLK}, s{sT0}", f"v_add_u32 v{ARP}, s{sT0}, v{ARL}"]
    def pread(j, c, rt): return f"ds_read_b128 {bs(4*(kpos['P%d' % j]+c)+rt)}, v{ARP} offset:{c*2048 + (rt >> 1)*6144 + (rt & 1)*256}"
    for i, (q, k) in enumerate(orderB):
        x = ("w2", i); j = int(k[1]); cnt[q] = cnt.get(q, 0) + 1
        for c in range(3):
            f0 = 4 * (kpos[k] + c)
            for ct in range(2 if q < 4 else 1):
                rd = []
                if k not in seen and ct == 0:
                    if k[0] == "O":
                        rd += [oread(j, c, rt) for rt in range(4)]
                    else:
                        if c == 0: rd += parp(j)
                        rd += [pread(j, c, rt) for rt in range(4)]
                tl = accB[q] + ct
                first = cnt[q] == 1 and c == 0
                units.append(dict(ep=ep[x], rd=rd, tr=((TRB + 3*ct) if q < 4 else TRBH, slot[x]*BLK + 4096*c, 1024), ph="B", q=q, ct=ct, blk=i, first=first,
                                  last=(cnt[q] == 6 and c == 2), tl=tl,
                                  mf=[(M16, v(tile(tl)+4*rt, 4), bs(f0+rt), "0" if first else v(tile(tl)+4*rt, 4)) for rt in range(4)]))
        seen.add(k)
    NU = len(units)
    for k in cfg.RE:
        us = [i for i, u in enumerate(units) if u["ep"] == RE[k]]
        us = us[len(us) - (len(us) * 2 // 3 if len(us) > 12 else 12):] if len(us) > 12 else us
        j = int(k[1])
        for n in range(12):
            f = 4 * kpos[k] + n
            i = us[n * len(us) // 12]
            lastuse = 108 + f if f < 36 else 144 + f - 36
            i = max(i, lastuse + cfg.NF + 1)
            assert units[i]["ep"] == RE[k], (k, n, i)
            if k[0] == "P" and n == 0: units[i]["rd"] += parp(j)
            units[i]["rd"].append((oread if k[0] == "O" else pread)(j, n // 4, n % 4))
    rp = [0] * NU; bp = {}
    LAu = lambda j: cfg.LA + (2 if len(units[j]["mf"]) == 1 else 0)
    for j in range(NU):
        r = max(-1, j - min(LAu(j), cfg.NF - 1))
        if j:
            r = max(r, rp[j-1])
            if j > 1 and rp[j-2] >= 0: r = max(r, rp[j-2] + 1)
            if units[j]["ep"] != units[j-1]["ep"]:
                r = max(r, rp[j-1] + (cfg.BD + (1 if len(units[j]["mf"]) == 1 else 0))); bp[units[j]["ep"]] = r
        else: bp[0] = -1
        rp[j] = r
        assert r <= j - 2 or j < 2, (j, r)
    gap0 = []; ng = 0
    for u in units: gap0.append(ng); ng += len(u["mf"])
    gap0.append(ng)
    fixed = [[] for _ in range(ng)]
    cap = []
    for u in units: cap += [24 if u["ph"] == "A" else 8] * len(u["mf"])
    def barrier(e):
        mine = [i for i, y in enumerate(vm) if y[0] in ep and ep[y[0]] == e]
        bm = cfg.barmark is not None and 0 <= e - cfg.barmark < 4
        lw = max(st["lastr"], st["lastw"]) if e in firstO.values() else st["lastr"]
        if bm:
            wait_lds(lw); G.mark(A, 1 + 3*(e - cfg.barmark))
        wait(max(mine) if mine else None, lw)
        if bm: G.mark(A, 2 + 3*(e - cfg.barmark))
        if "b" not in cfg.abl or e < 7: A("s_barrier")
        if bm: G.mark(A, 3 + 3*(e - cfg.barmark))
    fidx = {}
    def rdlist(j):
        u = units[j]; base, o, de = u["tr"]; fr = FR + 4 * (j % cfg.NF)
        out = [("R", x) if x.startswith("ds_") else x for x in u["rd"]]
        out += [("R", f"ds_read_b64_tr_b16 {v(fr,2)}, {win(base, o)}"), ("R", f"ds_read_b64_tr_b16 {v(fr+2,2)}, {win(base, o + de)}")]
        out.append(("F", lambda j=j: fidx.__setitem__(j, len(lds) - 1)))
        return out
    head = []
    for i in range(-1, NU):
        items = []
        for e, b in bp.items():
            if b == i: items.append((cfg.bcost, ("F", lambda e=e: barrier(e))))
        nb = len(items)
        for j in range(NU):
            if rp[j] == i: items += [(0 if x[0] == "F" else cfg.rcost if x[0] == "R" and "b128" in x[1] else 4, x) for x in rdlist(j)]
        if i < 0: head = items; continue
        n = len(units[i]["mf"])
        real = [it for it in items[nb:] if it[0]]
        g = 0; k = 0
        fixed[gap0[i]] += items[:nb]
        first_g = 1 if (nb and n > 1) else 0
        glue = False
        for it in items[nb:]:
            if it[0] and not glue:
                g = first_g + k * (n - first_g) // max(1, len(real))
            if it[0]: k += 1
            glue = isinstance(it[1], str) and it[1].startswith(("s_cmp", "s_mov", "s_cselect"))
            fixed[gap0[i] + g].append(it)
    nlab = [0]
    def poll_issue(): emit((f"buffer_load_dword v{VFV}, v{VFL}, s[16:19], s{sFP2} offen sc1", ("poll", len(vm))))
    def poll_check(val):
        assert ("flag", val) in vm
        if cfg.barmark == -8: G.mark(A, 4*val - 1)
        wait_vm(max(i for i, y in enumerate(vm) if y[0] == "poll"))
        n = nlab[0]; nlab[0] += 1
        A(f"v_cmp_le_u32 vcc, {val}, v{VFV}"); A("s_cmp_eq_u64 vcc, -1"); A(f"s_cbranch_scc0 L2_spin{n}"); A.label(f"L2_ok{n}")
        if cfg.barmark == -8: G.mark(A, 4*val)
    def gcost(g): return sum(c for c, _ in fixed[g])
    extra = {}
    for e in range(NE):
        lo = gap0[max(0, bp[e])] + 1; hi = gap0[bp[e+1]] if e + 1 < NE else ng
        xs_ = [x for x in loads if issue[x] == e and not ("d" in cfg.abl and ep[x] > 8)]
        val = {chk[0]: 1, chk[1]: 2, chk[2]: 3}.get(e)
        todo = [[("F", poll_issue)]] if val and not cfg.pollpre else []
        gated = lambda x: x[0] == "pa" and chk[x[1]] == e
        for x in xs_:
            if not gated(x): todo += [("D", x, k) for k in range(3)]
        if val:
            while len(todo) < (4 if not cfg.pollpre else 2): todo.append([])
            todo.append([("F", lambda val=val: poll_check(val))])
        for x in xs_:
            if gated(x): todo += [("D", x, k) for k in range(3)]
        if cfg.pollpre and e + 1 in chk.values(): todo.insert(len(todo) * cfg.pollpre // 4, [("F", poll_issue)])
        prev = lo - 1
        for k, y in enumerate(todo):
            w0 = lo + k * (hi - lo) // len(todo); w1_ = max(w0 + 1, lo + (k + 1) * (hi - lo) // len(todo))
            g = min(range(w0, min(w1_, hi)), key=lambda g: gcost(g) - cap[g]) if w0 < hi else hi - 1
            if y: fixed[g].append((cfg.dcost + (8 if (y[0] == "D" and y[2] == 0) else 0), ("DM", y)))
    def mish(tiles, p):
        out = []; els = [(gi, tl, e) for gi, tl in enumerate(tiles) for e in range(16)]
        tm = lambda n: TMP + n % 4
        if p < 4: out.append(f"s_add_u32 s{sS1}, s{sACT}, {4096*p}")
        X = lambda n: tile(els[n][1]) + els[n][2]
        for n in range(0, len(els) + 2, 2):
            cur = n < len(els) and "m" not in cfg.abl
            if cur: out += [f"v_exp_f32 v{tm(n+i)}, v{X(n+i)}" for i in range(2)]
            if n >= 2:
                gi, tl, e = els[n-1]
                if "m" not in cfg.abl:
                    out += [f"v_fma_f32 v{tm(n-2+i)}, -v{X(n-2+i)}, v{tm(n-2+i)}, v{X(n-2+i)}" for i in range(2)]
            if cur: out += [f"v_fma_f32 v{tm(n+i)}, v{tm(n+i)}, v{C1}, v{C1}" for i in range(2)]
            if n >= 2: out.append(f"v_cvt_pk_bf16_f32 v{STG+8*gi+e//2}, v{tm(n-2)}, v{tm(n-1)}")
            if cur:
                out += [f"v_fma_f32 v{tm(n+i)}, v{tm(n+i)}, v{tm(n+i)}, 0.5" for i in range(2)]
            if n >= 2 and e % 8 == 7:
                pc = e // 8; src = v(STG + 8*gi + 4*pc, 4)
                out.append(("W", f"ds_write_b128 v{VAW+gi if p < 4 else VAH}, {src} offset:{(16384*p if p < 4 else 0) + 4096*pc}"))
            if cur: out += [f"v_rcp_f32 v{tm(n+i)}, v{tm(n+i)}" for i in range(2)]
            if n >= 2 and e % 8 == 7:
                out.append((f"buffer_store_dwordx4 {src}, v{VAG+gi}, s[16:19], s{sS1 if p < 4 else sACH} offen offset:{1024*pc} sc1", ("act", p)))
        return out
    def flag(p, val):
        if cfg.barmark == -8: G.mark(A, 4*val - 3)
        wait_vm(max(i for i, y in enumerate(vm) if y == ("act", p)))
        if cfg.barmark == -8: G.mark(A, 4*val - 2)
        A(f"v_mov_b32 v{VFW}, {val}")
        emit((f"buffer_store_dword v{VFW}, v{VL4}, s[16:19], s{sFL} offen sc1", ("flag", val)))
    pstate = [0]
    def epi(tl, q, ct):
        out = []
        if ct == 0:
            if q == 4: out.append(f"s_mov_b32 s{sP}, s{sPH}")
            elif q: out.append(f"s_add_u32 s{sP}, s{sP}, s{sDP}")
            out.append(f"s_add_u32 s{sS2}, s{sP}, 36864")
        for gg in range(2):
            o = STG + 8*ct + 4*gg; b = tile(tl) + 8*gg
            out += [f"v_cvt_pk_bf16_f32 v{o+j}, v{b+2*j}, v{b+2*j+1}" for j in (0, 2, 1, 3)]
            out += [f"v_permlane16_swap_b32 v{o}, v{o+2}", f"v_permlane16_swap_b32 v{o+1}, v{o+3}"]
            out.append((f"buffer_store_dwordx4 {v(o,4)}, v{VL16}, s[16:19], s{sP if gg == 0 else sS2} offen offset:{1024*ct} sc1", ("st", q)))
        return out
    jobs = [(2, gap0[35], zjob)]
    for p in range(3):
        end = gap0[36*(p+2) + 1] if p < 2 else min(gap0[bp[firstO[1]]], gap0[146])
        jobs.append((gap0[36*(p+1) + 1], end, mish([accA[p], accA[p] + 1], p)))
    jobs.append((gap0[144 + 2], gap0[nA + cfg.d3], mish([accA[3], accA[3] + 1], 3)))
    jobs.append((gap0[nA + cfg.d3], gap0[nA + cfg.dH], mish([4], 4)))
    assert nA + cfg.dH <= bp[firstO[2]]
    endq = {}
    for i, u in enumerate(units):
        if u.get("last"): endq[u["q"]] = min(ng, gap0[i + 1] + 2)
    cuts = [endq[0]]
    for q in (1, 2): cuts.append(max(endq[q], endq[0] + q * (endq[3] - endq[0]) // 3))
    cuts += [endq[3], ng, ng]
    for q in range(5):
        jobs.append((cuts[q], cuts[q+1], [x for ct in range(2 if q < 4 else 1) for x in epi(accB[q] + ct, q, ct)]))
    def jcost(x):
        if isinstance(x, tuple): return cfg.wcost if x[0] == "W" else cfg.scost
        return 8 if x.startswith(("v_exp", "v_rcp")) else 4
    placed = [[] for _ in range(ng + 1)]
    for lo, hi, lst in jobs:
        if lo >= hi:
            placed[min(lo, ng)] += lst; continue
        wt = [cap[g] + 8 for g in range(lo, hi)]
        tot = sum(jcost(x) for x in lst) + sum(gcost(g) + 8 for g in range(lo, hi))
        cum = 0; cw = 0; k = 0
        for g in range(lo, hi):
            cum += gcost(g) + 8; cw += wt[g - lo]
            while k < len(lst) and cum + jcost(lst[k]) / 2 <= tot * cw / sum(wt):
                placed[g].append(lst[k]); cum += jcost(lst[k]); k += 1
        placed[hi - 1] += lst[k:]
    dmc = {}
    def run(item):
        if item[0] == "DM":
            y = item[1]
            if y[0] == "D":
                if y[2] == 0: dmc[y[1]] = dma(y[1])
                for z in dmc[y[1]][y[2]]: emit(z)
            else:
                for z in y: emit(z)
        else: emit(item)
    for _, x in head: run(x) if isinstance(x, tuple) else emit(x)
    marks = {0: 3, 36: 4, 72: 5, 108: 6, 144: 7, nA: 8, nA + 36: 9, nA + 72: 10, nA + 108: 11}
    flags = {108 + cfg.fl[0]: (1, 1), 144 + cfg.fl[1]: (2, 2), nA + cfg.dH + cfg.fl2: (4, 3)}
    tr_desc = []
    for i, u in enumerate(units):
        if i: tr_desc.append(summ(A.lines[l0:]))
        l0 = len(A.lines)
        if i in marks: mk_(marks[i])
        if cfg.trace is not None and cfg.trace <= i < cfg.trace + 256 + 4:
            n = i - cfg.trace
            if n >= 4: A(f"v_writelane_b32 v{220 + (n-4)//64}, s{72 + 2*((n-4) % 8)}, {(n-4) % 64}")
            A(f"s_memtime s[{72 + 2*(n % 8)}:{73 + 2*(n % 8)}]")
        if fidx[i] > st["ldsw"]:
            j = i
            while j + 1 < NU and j + 1 < i + cfg.WP and (j + 1) in fidx and rp[j + 1] <= i - 2: j += 1
            wait_lds(fidx[j])
        for mi, (op, d, b, c) in enumerate(u["mf"]):
            A(f"{op} {d}, {v(FR+4*(i%cfg.NF),4)}, {b}, {c}")
            g = gap0[i] + mi
            for _, x in fixed[g]: run(x) if isinstance(x, tuple) else emit(x)
            for x in placed[g]: emit(x)
        if i in flags: flag(*flags[i])
        if cfg.pfk2 and i == NU - cfg.pfk2:
            A(f"s_getpc_b64 s[{sS1+8}:{sS1+9}]"); A.label("L2_pc")
            A(f"s_add_u32 s{sS1+8}, s{sS1+8}, fin_kernel-L2_pc"); A(f"s_addc_u32 s{sS1+9}, s{sS1+9}, 0")
            A(f"s_lshr_b32 s{sT0}, s2, 3"); A(f"s_lshl_b32 s{sT0}, s{sT0}, 8"); A(f"v_and_b32 v{VFW}, 128, v{VL4}"); A(f"v_add_u32 v{VFW}, s{sT0}, v{VFW}")
            A(f"v_min_u32 v{VFW}, L_text_end-fin_kernel-4, v{VFW}")
            emit((f"global_load_dword v{VFV}, v{VFW}, s[{sS1+8}:{sS1+9}]", ("pfk2", 0)))
    for x in placed[ng]: emit(x)
    if cfg.pads:
        A.pad_on = False
        w = []
        for k in range(A.pad_n): w += [f"    s_cmp_eq_u32 s{sW}, {k % 4}", f"    s_cbranch_scc1 L2_pad{k}", f"L2_ret{k}:"]
        A.lines[warm_at:warm_at] = w
    mk_(12)
    if cfg.trace is not None:
        A(f"s_lshl_b32 s{sT0}, s2, 2"); A(f"s_add_u32 s{sT0}, s{sT0}, s{sW}"); A(f"s_lshl_b32 s{sT0}, s{sT0}, 10"); A(f"s_add_u32 s{sT0}, s{sT0}, {G.STAMP_OFF + 0x400000}")
        A(f"v_add_u32 v2, s{sT0}, v{VL4}")
        for k in range(4): A(f"global_store_dword v2, v{220+k}, s[26:27] offset:{256*k}")
        open("trace_units.txt", "w").write("\n".join(tr_desc))
    G.stamp_end(A, 2, 26, "k1")
    A.label("L2_end"); A("s_endpgm")
    for n in range(nlab[0]):
        A.label(f"L2_spin{n}"); A.hist = []
        A(f"s_mov_b32 s{sT0}, 0")
        A.label(f"L2_sl{n}")
        A(f"buffer_load_dword v{VFV}, v{VFL}, s[16:19], s{sFP2} offen sc1"); A("s_waitcnt vmcnt(0)")
        A(f"v_cmp_le_u32 vcc, {n+1}, v{VFV}"); A("s_nop 1"); A("s_cmp_eq_u64 vcc, -1"); A(f"s_cbranch_scc1 L2_ok{n}")
        A(f"s_add_u32 s{sT0}, s{sT0}, 1"); A(f"s_cmp_lt_u32 s{sT0}, 0x10000"); A(f"s_cbranch_scc1 L2_sl{n}")
        A(f"s_branch L2_ok{n}")
    return (name, (256, 256, BIAS + 1152), 512, 256)
```
